```python
import torch

def _softmax(x, axis=-1):
    return torch.softmax(x, dim=axis)
def _gelu(x):
    return torch.nn.functional.gelu(x, approximate="tanh")
def _silu(x):
    return torch.nn.functional.silu(x)
def _sigmoid(x):
    return torch.sigmoid(x)
def _layernorm(x, axis=-1, eps=1e-5):
    m = x.mean(dim=axis, keepdim=True)
    v = x.var(dim=axis, keepdim=True, unbiased=False)
    return (x - m) / torch.sqrt(v + eps)
def _scatter_add(tgt, idx, src, axis=0):
    return tgt.clone().index_add_(axis, idx, src)
def _segment_sum(src, seg, n):
    out = torch.zeros((n,) + src.shape[1:], dtype=src.dtype)
    return out.index_add_(0, seg, src)
def _pad(x, pw):
    flat = tuple(v for pair in reversed(pw) for v in pair)
    return torch.nn.functional.pad(x, flat)

kernel_name = 'standalone__gqa_block_cached__near_ridge'

def setup_inputs():

    _w = (lambda a: (lambda t: t.to(torch.bfloat16) if t.is_floating_point() else t)(torch.as_tensor(a)))
    B, Sq, D = 8, 144, 512
    Hq, Hkv, Sk, Dh = 32, 32, 1024, 128
    assert Hq % Hkv == 0, (Hq, Hkv)
    return {
        "x": _w((lambda *s: torch.randn(*s, dtype=torch.bfloat16) * 0.8)(B, Sq, D)),
        "k_cache": _w((lambda *s: torch.randn(*s, dtype=torch.bfloat16) * 0.8)(B, Hkv, Sk, Dh)),
        "v_cache": _w((lambda *s: torch.randn(*s, dtype=torch.bfloat16) * 0.05)(B, Hkv, Sk, Dh)),
        "wq": _w((lambda *s: torch.randn(*s, dtype=torch.bfloat16) * 0.8)(D, Hq * Dh) * (D ** -0.5)),
        "wo": _w((lambda *s: torch.randn(*s, dtype=torch.bfloat16) * 0.05)(Hq * Dh, D) * ((Hq * Dh) ** -0.5)),
    }

def reference(x, k_cache, v_cache, wq, wo):
    B, Sq, D = x.shape
    Hq, Dh = 32, 128
    Hkv = k_cache.shape[1]
    rep = Hq // Hkv
    q = (lambda x, *d: x.permute(*d))((x @ wq).reshape(B, Sq, Hq, Dh), 0, 2, 1, 3)
    k = (lambda x, n, axis: torch.repeat_interleave(x, n, dim=axis))(k_cache, rep, axis=1)
    v = (lambda x, n, axis: torch.repeat_interleave(x, n, dim=axis))(v_cache, rep, axis=1)
    scores = torch.einsum("bhqd,bhkd->bhqk", q, k) * (Dh ** -0.5)
    p = _softmax(scores, axis=-1)
    o = torch.einsum("bhqk,bhkd->bhqd", p, v)
    return (lambda x, *d: x.permute(*d))(o, 0, 2, 1, 3).reshape(B, Sq, Hq * Dh) @ wo
```

```python
import math, sys

NS = 5
STAGES = 16
T_LOG2 = 10.0
C_SCALE = (128 ** -0.5) * math.log2(math.e)

def f32bits(x):
    import struct
    return struct.unpack("<I", struct.pack("<f", x))[0]

class Asm:
    def __init__(self):
        self.l = []
    def __call__(self, s):
        self.l.append("    " + s)
    def label(self, s):
        self.l.append(s + ":")
    def raw(self, s):
        self.l.append(s)
    def text(self):
        return "\n".join(self.l) + "\n"

def vr(b, n=None):
    return f"v{b}" if n is None else f"v[{b}:{b+n-1}]"
def ar(b, n=None):
    return f"a{b}" if n is None else f"a[{b}:{b+n-1}]"

def srd(a, d, lo, hi, addlo_sgpr, nrec):
    a(f"s_add_u32 s{d}, s{lo}, s{addlo_sgpr}")
    a(f"s_addc_u32 s{d+1}, s{hi}, 0")
    a(f"s_and_b32 s{d+1}, s{d+1}, 0xffff")
    a(f"s_mov_b32 s{d+2}, {nrec}")
    a(f"s_mov_b32 s{d+3}, 0x00020000")

def gen_attn(a):
    a.raw(".globl attn_kernel")
    a.raw(".p2align 8")
    a.raw(".type attn_kernel,@function")
    a.label("attn_kernel")
    a("s_cmp_ge_u32 s2, 256")
    a("s_cbranch_scc1 A_END")
    a("s_load_dwordx8 s[4:11], s[0:1], 0")
    a("s_load_dwordx2 s[12:13], s[0:1], 56")
    a("s_and_b32 s14, s2, 7")
    a("s_lshr_b32 s15, s2, 3")
    a("v_lshrrev_b32 v1, 6, v0")
    a("v_and_b32 v0, 63, v0")
    a("s_nop 0")
    a("v_readfirstlane_b32 s16, v1")
    a("s_waitcnt lgkmcnt(0)")
    a("s_mul_i32 s17, s14, 147456")
    srd(a, 20, 4, 5, 17, 147456)
    a("s_lshl_b32 s17, s14, 5")
    a("s_add_u32 s17, s17, s15")
    a("s_lshl_b32 s17, s17, 18")
    srd(a, 24, 6, 7, 17, 262144)
    srd(a, 28, 8, 9, 17, 262144)
    a("s_lshl_b32 s17, s15, 8")
    a("s_sub_u32 s18, 4194304, s17")
    srd(a, 32, 10, 11, 17, "s18")
    a("s_mul_i32 s18, s14, 1179648")
    a("s_add_u32 s18, s18, s17")
    a("s_sub_u32 s19, 1179648, s17")
    srd(a, 36, 12, 13, 18, "s19")
    a("s_cmp_eq_u32 s16, 3")
    a("s_cbranch_scc1 A_LOADER")

    a("v_lshrrev_b32 v1, 4, v0")
    a("v_and_b32 v2, 15, v0")
    a("v_lshlrev_b32 v3, 16, v1")
    a("v_lshl_add_u32 v3, v2, 4, v3")
    a("s_mul_i32 s17, s16, 49152")
    a("v_lshlrev_b32 v4, 10, v2")
    a("v_lshl_add_u32 v4, v1, 4, v4")
    a("v_add_u32 v4, s17, v4")
    a("s_mov_b32 s40, 0x05040100")
    a("s_mov_b32 s41, 0x07060302")
    a("s_mov_b32 s42, 0")
    a("s_mov_b32 s43, 16384")
    a("s_mov_b32 s44, 32768")
    QF = 16; QT = 64; RB = 160; AB = 224; XB = 16
    def qt(t, i): return QT + (t * 8 + i) * 4
    def issue_loads(ks):
        r = RB + (ks & 1) * 32
        for j in range(8):
            a(f"s_mov_b32 s{46 + (j & 3)}, {(ks * 32 + j) * 8192}")
            a(f"buffer_load_dwordx4 {vr(r + j * 4, 4)}, v3, s[32:35], s{46 + (j & 3)} offen")
        x = XB + (ks & 1) * 12
        for t in range(3):
            a(f"buffer_load_dwordx4 {vr(x + t * 4, 4)}, v4, s[20:23], s{42 + t} offen offset:{ks * 64}")
    issue_loads(0)
    for ks in range(16):
        if ks + 1 < 16:
            issue_loads(ks + 1)
            a("s_waitcnt vmcnt(11)")
        else:
            a("s_waitcnt vmcnt(0)")
        r = RB + (ks & 1) * 32
        for i in range(8):
            for p in range(4):
                a(f"v_perm_b32 {vr(AB + i * 4 + p)}, {vr(r + (2 * p + 1) * 4 + (i >> 1))}, {vr(r + (2 * p) * 4 + (i >> 1))}, s{40 + (i & 1)}")
        a("s_nop 1")
        x = XB + (ks & 1) * 12
        for t in range(3):
            for i in range(8):
                c = "0" if ks == 0 else vr(qt(t, i), 4)
                a(f"v_mfma_f32_16x16x32_bf16 {vr(qt(t, i), 4)}, {vr(AB + i * 4, 4)}, {vr(x + t * 4, 4)}, {c}")
    a("s_nop 15")
    def qf(t, s): return QF + (t * 4 + s) * 4
    for t in range(3):
        for s in range(4):
            for p in range(4):
                a(f"v_cvt_pk_bf16_f32 {vr(qf(t, s) + p)}, {vr(qt(t, 2 * p) + s)}, {vr(qt(t, 2 * p + 1) + s)}")
    SB = 64; PB = 112
    MRAW = 136; MNEG = 139; THR = 142; LS = 145
    KA = 148
    VA = 152
    KA0 = 160
    VA0 = 164
    TMP = 176
    OA = 0; KF = 96; VF = 160
    def sreg(t, kt): return SB + (t * 4 + kt) * 4
    def preg(t, u): return PB + (t * 2 + u) * 4
    def oreg(t, i): return OA + (t * 8 + i) * 4
    def kf(kt, s): return KF + (kt * 4 + s) * 4
    def vf(i, u): return VF + (i * 2 + u) * 4
    for t in range(3):
        a(f"v_mov_b32 {vr(MRAW + t)}, 0xff800000")
        a(f"v_mov_b32 {vr(THR + t)}, 0xff800000")
        a(f"v_mov_b32 {vr(MNEG + t)}, 0")
        a(f"v_mov_b32 {vr(LS + t)}, 0")
    for i in range(96):
        a(f"v_accvgpr_write_b32 {ar(OA + i)}, 0")
    a("v_and_b32 v5, 3, v2")
    a("v_lshlrev_b32 v5, 2, v5")
    a("v_lshrrev_b32 v6, 2, v2")
    a("v_or_b32 v5, v5, v6")
    a("v_lshlrev_b32 v6, 2, v1")
    a("v_xor_b32 v5, v5, v6")
    for s in range(4):
        a(f"v_xor_b32 v6, {s}, v5")
        a(f"v_lshlrev_b32 v6, 4, v6")
        a(f"v_lshl_add_u32 {vr(KA0 + s)}, v2, 8, v6")
    a("v_lshrrev_b32 v5, 2, v2")
    a("v_and_b32 v6, 3, v2")
    a("v_lshl_add_u32 v7, v1, 2, v5")
    a("v_and_b32 v8, 7, v7")
    a("v_lshlrev_b32 v7, 8, v7")
    a("v_lshrrev_b32 v9, 1, v6")
    a("v_lshl_add_u32 v7, v9, 4, v7")
    a("v_and_b32 v9, 1, v6")
    a("v_lshl_add_u32 v7, v9, 3, v7")
    a("v_add_u32 v7, 16384, v7")
    for i in range(8):
        a(f"v_xor_b32 v9, {i}, v8")
        a(f"v_lshl_add_u32 {vr(VA0 + i)}, v9, 5, v7")
    a(f"s_mov_b32 s45, {f32bits(C_SCALE):#x}")
    a(f"s_mov_b32 s50, {f32bits(T_LOG2 / C_SCALE):#x}")
    for j in range(STAGES):
        slot = (j % NS) * 32768
        a(f"s_mov_b32 s17, {slot}")
        for s in range(4):
            a(f"v_add_u32 {vr(KA + s)}, s17, {vr(KA0 + s)}")
        for i in range(8):
            a(f"v_add_u32 {vr(VA + i)}, s17, {vr(VA0 + i)}")
        a("s_barrier")
        for kt in range(4):
            for s in range(4):
                a(f"ds_read_b128 {ar(kf(kt, s), 4)}, {vr(KA + s)} offset:{kt * 4096}")
        for i in range(8):
            for u in range(2):
                for hh in range(2):
                    a(f"ds_read_b64_tr_b16 {ar(vf(i, u) + hh * 2, 2)}, {vr(VA + i)} offset:{(2 * u + hh) * 4096}")
        a("s_waitcnt lgkmcnt(0)")
        for t in range(3):
            for kt in range(4):
                for s in range(4):
                    c = "0" if s == 0 else vr(sreg(t, kt), 4)
                    a(f"v_mfma_f32_16x16x32_bf16 {vr(sreg(t, kt), 4)}, {ar(kf(kt, s), 4)}, {vr(qf(t, s), 4)}, {c}")
        a("s_nop 15")
        for t in range(3):
            S = sreg(t, 0)
            a(f"v_max3_f32 v{TMP}, v{S}, v{S+1}, v{S+2}")
            a(f"v_max3_f32 v{TMP+1}, v{S+3}, v{S+4}, v{S+5}")
            a(f"v_max3_f32 v{TMP+2}, v{S+6}, v{S+7}, v{S+8}")
            a(f"v_max3_f32 v{TMP+3}, v{S+9}, v{S+10}, v{S+11}")
            a(f"v_max3_f32 v{TMP+4}, v{S+12}, v{S+13}, v{S+14}")
            a(f"v_max3_f32 v{TMP}, v{TMP}, v{TMP+1}, v{S+15}")
            a(f"v_max3_f32 v{TMP+2}, v{TMP+2}, v{TMP+3}, v{TMP+4}")
            a(f"v_max_f32 v{TMP}, v{TMP}, v{TMP+2}")
            a(f"v_cmp_gt_f32 vcc, v{TMP}, v{THR+t}")
            a(f"s_cbranch_vccz A_FAST_{j}_{t}")
            a(f"v_mov_b32 v{TMP+1}, v{TMP}")
            a("s_nop 1")
            a(f"v_permlane32_swap_b32 v{TMP}, v{TMP+1}")
            a(f"v_max_f32 v{TMP}, v{TMP}, v{TMP+1}")
            a(f"v_mov_b32 v{TMP+1}, v{TMP}")
            a("s_nop 1")
            a(f"v_permlane16_swap_b32 v{TMP}, v{TMP+1}")
            a(f"v_max3_f32 v{TMP}, v{TMP}, v{TMP+1}, v{MRAW+t}")
            a(f"v_sub_f32 v{TMP+1}, v{MRAW+t}, v{TMP}")
            a(f"v_mul_f32 v{TMP+1}, s45, v{TMP+1}")
            a(f"v_exp_f32 v{TMP+1}, v{TMP+1}")
            a(f"v_mov_b32 v{MRAW+t}, v{TMP}")
            a(f"v_mul_f32 v{MNEG+t}, s45, v{TMP}")
            a(f"v_sub_f32 v{MNEG+t}, 0, v{MNEG+t}")
            a(f"v_add_f32 v{THR+t}, s50, v{TMP}")
            a(f"v_mul_f32 v{LS+t}, v{LS+t}, v{TMP+1}")
            for i in range(32):
                a(f"v_accvgpr_read_b32 v{TMP+2}, {ar(oreg(t, 0) + i)}")
                a(f"v_mul_f32 v{TMP+2}, v{TMP+2}, v{TMP+1}")
                a(f"v_accvgpr_write_b32 {ar(oreg(t, 0) + i)}, v{TMP+2}")
            a.label(f"A_FAST_{j}_{t}")
            for e in range(16):
                a(f"v_fma_f32 v{S+e}, v{S+e}, s45, v{MNEG+t}")
            for e in range(16):
                a(f"v_exp_f32 v{S+e}, v{S+e}")
            a("s_nop 0")
            for e in range(16):
                a(f"v_add_f32 v{LS+t}, v{LS+t}, v{S+e}")
            for e in range(8):
                a(f"v_cvt_pk_bf16_f32 v{preg(t, 0) + e}, v{S+2*e}, v{S+2*e+1}")
        a("s_nop 1")
        for t in range(3):
            for i in range(8):
                for u in range(2):
                    a(f"v_mfma_f32_16x16x32_bf16 {ar(oreg(t, i), 4)}, {ar(vf(i, u), 4)}, {vr(preg(t, u), 4)}, {ar(oreg(t, i), 4)}")
        a("s_nop 7")
    a("s_nop 15")
    a("s_mul_i32 s17, s16, 393216")
    a("v_lshlrev_b32 v5, 13, v2")
    a("v_lshl_add_u32 v5, v1, 3, v5")
    a("v_add_u32 v5, s17, v5")
    a("s_mov_b32 s42, 0")
    a("s_mov_b32 s43, 131072")
    a("s_mov_b32 s44, 262144")
    for t in range(3):
        a(f"v_mov_b32 v{TMP}, v{LS+t}")
        a(f"v_mov_b32 v{TMP+1}, v{LS+t}")
        a("s_nop 1")
        a(f"v_permlane32_swap_b32 v{TMP}, v{TMP+1}")
        a(f"v_add_f32 v{TMP}, v{TMP}, v{TMP+1}")
        a(f"v_mov_b32 v{TMP+1}, v{TMP}")
        a("s_nop 1")
        a(f"v_permlane16_swap_b32 v{TMP}, v{TMP+1}")
        a(f"v_add_f32 v{TMP}, v{TMP}, v{TMP+1}")
        a(f"v_rcp_f32 v{TMP}, v{TMP}")
        a("s_nop 0")
        for i in range(8):
            for r in range(4):
                a(f"v_accvgpr_read_b32 v{TMP+2+r}, {ar(oreg(t, i) + r)}")
            for r in range(4):
                a(f"v_mul_f32 v{TMP+2+r}, v{TMP+2+r}, v{TMP}")
            d = TMP + 8 + (i & 3) * 2
            a(f"v_cvt_pk_bf16_f32 v{d}, v{TMP+2}, v{TMP+3}")
            a(f"v_cvt_pk_bf16_f32 v{d+1}, v{TMP+4}, v{TMP+5}")
            a(f"buffer_store_dwordx2 {vr(d, 2)}, v5, s[36:39], s{42+t} offen offset:{i*32}")
            if (i & 3) == 3:
                a("s_waitcnt vmcnt(0)")
    a("s_branch A_END")

    a.label("A_LOADER")
    a("v_lshrrev_b32 v1, 4, v0")
    a("v_and_b32 v2, 15, v0")
    for q in range(4):
        a(f"v_lshlrev_b32 v3, 2, v1")
        a(f"v_or_b32 v3, {q}, v3")
        a(f"v_xor_b32 v3, v3, v2")
        a(f"v_lshlrev_b32 v3, 4, v3")
        a(f"v_lshl_add_u32 v{4+q}, v1, 8, v3")
    for p in range(2):
        a(f"v_or_b32 v3, {p << 2}, v1")
        a(f"v_lshlrev_b32 v3, 1, v3")
        a(f"v_xor_b32 v3, v3, v2")
        a(f"v_lshlrev_b32 v3, 4, v3")
        a(f"v_lshl_add_u32 v{8+p}, v1, 8, v3")
    def issue_stage(st):
        slot = (st % NS) * 32768
        for kv in range(2):
            for G in range(4):
                a("s_waitcnt vmcnt(59)")
                a(f"s_mov_b32 m0, {slot + kv * 16384 + G * 4096}")
                a(f"s_mov_b32 s17, {st * 16384 + G * 4096}")
                for q in range(4):
                    vo = 4 + q if kv == 0 else 8 + (q & 1)
                    sr = "s[24:27]" if kv == 0 else "s[28:31]"
                    a(f"buffer_load_dwordx4 v{vo}, {sr}, s17 offen offset:{q * 1024} lds")
    last = -1
    for st in range(min(NS, STAGES)):
        issue_stage(st); last = st
    for j in range(STAGES):
        n = 32 * (last - j)
        if n < 63:
            a(f"s_waitcnt vmcnt({n})")
        a("s_barrier")
        if j >= 1 and j - 1 + NS < STAGES:
            issue_stage(j - 1 + NS); last = j - 1 + NS
    a.label("A_END")
    a("s_endpgm")

def gen_oproj(a):
    a.raw(".globl oproj_kernel")
    a.raw(".p2align 8")
    a.raw(".type oproj_kernel,@function")
    a.label("oproj_kernel")
    a("s_cmp_ge_u32 s2, 192")
    a("s_cbranch_scc1 O_END")
    a("s_load_dwordx4 s[4:7], s[0:1], 32")
    a("s_load_dwordx2 s[8:9], s[0:1], 56")
    a("s_and_b32 s14, s2, 7")
    a("s_lshr_b32 s15, s2, 3")
    a("s_mul_i32 s16, s15, 43")
    a("s_lshr_b32 s16, s16, 7")
    a("s_mul_i32 s17, s16, 3")
    a("s_sub_u32 s17, s15, s17")
    a("v_lshrrev_b32 v1, 6, v0")
    a("v_and_b32 v0, 63, v0")
    a("s_nop 0")
    a("v_readfirstlane_b32 s18, v1")
    a("s_waitcnt lgkmcnt(0)")
    a("s_lshl_b32 s19, s18, 20")
    a("s_lshl_b32 s20, s16, 7")
    a("s_add_u32 s19, s19, s20")
    a("s_sub_u32 s20, 4194304, s19")
    srd(a, 24, 4, 5, 19, "s20")
    a("s_mul_i32 s19, s14, 144")
    a("s_mul_i32 s20, s17, 48")
    a("s_add_u32 s19, s19, s20")
    a("s_mov_b32 s21, s19")
    a("s_lshl_b32 s19, s19, 13")
    a("s_lshl_b32 s20, s18, 11")
    a("s_add_u32 s19, s19, s20")
    a("s_sub_u32 s20, 393216, s20")
    srd(a, 28, 8, 9, 19, "s20")
    a("s_lshl_b32 s19, s21, 10")
    a("s_lshl_b32 s20, s16, 7")
    a("s_add_u32 s19, s19, s20")
    a("s_sub_u32 s20, 49152, s20")
    srd(a, 32, 6, 7, 19, "s20")
    a("v_lshrrev_b32 v1, 4, v0")
    a("v_and_b32 v2, 15, v0")
    a("v_lshlrev_b32 v3, 13, v1")
    a("v_lshl_add_u32 v3, v2, 3, v3")
    a("v_lshlrev_b32 v4, 13, v2")
    a("v_lshl_add_u32 v4, v1, 4, v4")
    a("s_mov_b32 s40, 0x05040100")
    a("s_mov_b32 s41, 0x07060302")
    a("s_mov_b32 s42, 0")
    a("s_mov_b32 s43, 131072")
    a("s_mov_b32 s44, 262144")
    ACC = 16; RB = 64; XB = 96; AB = 120
    def acc(t, i): return ACC + (t * 4 + i) * 4
    def issue(ks):
        r = RB + (ks & 1) * 16
        for j in range(8):
            off = (ks * 32 + j) * 1024
            a(f"s_mov_b32 s{46 + (j & 3)}, {off}")
            a(f"buffer_load_dwordx2 {vr(r + j * 2, 2)}, v3, s[24:27], s{46 + (j & 3)} offen")
        x = XB + (ks & 1) * 12
        for t in range(3):
            a(f"buffer_load_dwordx4 {vr(x + t * 4, 4)}, v4, s[28:31], s{42 + t} offen offset:{ks * 64}")
    issue(0)
    for ks in range(32):
        if ks + 1 < 32:
            issue(ks + 1)
            a("s_waitcnt vmcnt(11)")
        else:
            a("s_waitcnt vmcnt(0)")
        r = RB + (ks & 1) * 16
        for i in range(4):
            for p in range(4):
                a(f"v_perm_b32 {vr(AB + i * 4 + p)}, {vr(r + (2 * p + 1) * 2 + (i >> 1))}, {vr(r + (2 * p) * 2 + (i >> 1))}, s{40 + (i & 1)}")
        a("s_nop 1")
        x = XB + (ks & 1) * 12
        for t in range(3):
            for i in range(4):
                c = "0" if ks == 0 else vr(acc(t, i), 4)
                a(f"v_mfma_f32_16x16x32_bf16 {vr(acc(t, i), 4)}, {vr(AB + i * 4, 4)}, {vr(x + t * 4, 4)}, {c}")
    a("s_nop 15")
    a("s_mul_i32 s19, s18, 12288")
    a("v_lshlrev_b32 v5, 2, v0")
    a("v_add_u32 v6, s19, v5")
    for e in range(48):
        a(f"ds_write_b32 v6, v{ACC + e} offset:{e * 256}")
    a("s_waitcnt lgkmcnt(0)")
    a("s_barrier")
    a("s_lshl_b32 s19, s18, 8")
    a("v_add_u32 v6, s19, v5")
    for ti in range(12):
        for w in range(4):
            a(f"ds_read_b32 v{64 + ti * 4 + w}, v6 offset:{w * 12288 + ti * 1024}")
    a("s_waitcnt lgkmcnt(0)")
    for ti in range(12):
        b = 64 + ti * 4
        a(f"v_add_f32 v{b}, v{b}, v{b+1}")
        a(f"v_add_f32 v{b+2}, v{b+2}, v{b+3}")
        a(f"v_add_f32 v{b}, v{b}, v{b+2}")
    a("v_lshlrev_b32 v7, 10, v2")
    a("v_lshl_add_u32 v7, v1, 5, v7")
    a("s_lshl_b32 s19, s18, 3")
    a("v_add_u32 v7, s19, v7")
    a("s_mov_b32 s43, 16384")
    a("s_mov_b32 s44, 32768")
    for t in range(3):
        b = 64 + t * 16
        a(f"v_cvt_pk_bf16_f32 v{120 + 2*t}, v{b}, v{b+4}")
        a(f"v_cvt_pk_bf16_f32 v{121 + 2*t}, v{b+8}, v{b+12}")
        a(f"buffer_store_dwordx2 {vr(120 + 2*t, 2)}, v7, s[32:35], s{42+t} offen")
    a.label("O_END")
    a("s_endpgm")

def kd(a, name, nfv, accum, sgpr=96):
    a.raw(f".amdhsa_kernel {name}")
    a.raw(f"  .amdhsa_next_free_vgpr {nfv}")
    a.raw(f"  .amdhsa_next_free_sgpr {sgpr}")
    a.raw(f"  .amdhsa_accum_offset {accum}")
    a.raw("  .amdhsa_group_segment_fixed_size 0")
    a.raw("  .amdhsa_kernarg_size 64")
    a.raw("  .amdhsa_user_sgpr_count 2")
    a.raw("  .amdhsa_user_sgpr_kernarg_segment_ptr 1")
    a.raw("  .amdhsa_system_sgpr_workgroup_id_x 1")
    a.raw(".end_amdhsa_kernel")

def main():
    a = Asm()
    a.raw("; @launch kernel=attn_kernel grid=(256,1,1) block=(256,1,1) lds=163840")
    a.raw("; @launch kernel=oproj_kernel grid=(192,1,1) block=(256,1,1) lds=49152")
    a.raw('.amdgcn_target "amdgcn-amd-amdhsa--gfx950"')
    a.raw(".text")
    gen_attn(a)
    gen_oproj(a)
    a.raw('.section .rodata,"a"')
    a.raw(".p2align 6")
    kd(a, "attn_kernel", 480, 256)
    a.raw(".p2align 6")
    kd(a, "oproj_kernel", 136, 136)
    open(sys.argv[1], "w").write(a.text())

main()
```

```python
import math, sys, struct, os

NS = 5
STAGES = 16
T_LOG2 = 10.0
C_SCALE = (128 ** -0.5) * math.log2(math.e)
NT_FLAG = " nt" if os.environ.get("KV_NT", "1") == "1" else ""
PART_OFF = 16 * 1024 * 1024

def f32bits(x):
    return struct.unpack("<I", struct.pack("<f", x))[0]

class Asm:
    def __init__(self):
        self.l = []
    def __call__(self, s):
        if s.endswith(":") and "\n" not in s:
            self.l.append(s)
        else:
            self.l.append("    " + s)
    def label(self, s):
        self.l.append(s + ":")
    def raw(self, s):
        self.l.append(s)
    def text(self):
        return "\n".join(self.l) + "\n"

def vr(b, n=None):
    return f"v{b}" if n is None else f"v[{b}:{b+n-1}]"
def ar(b, n=None):
    return f"a{b}" if n is None else f"a[{b}:{b+n-1}]"

def srd(a, d, lo, hi, addlo_sgpr, nrec):
    a(f"s_add_u32 s{d}, s{lo}, s{addlo_sgpr}")
    a(f"s_addc_u32 s{d+1}, s{hi}, 0")
    a(f"s_and_b32 s{d+1}, s{d+1}, 0xffff")
    a(f"s_mov_b32 s{d+2}, {nrec}")
    a(f"s_mov_b32 s{d+3}, 0x00020000")

TS = os.environ.get("TS", "0") == "1"
def stamp(a, idx, wavesel, wavereg="s16", pfx="TS"):
    if not TS: return
    a("s_memtime s[90:91]")
    a("s_load_dwordx2 s[92:93], s[0:1], 48")
    a("s_waitcnt lgkmcnt(0)")
    a(f"s_cmp_eq_u32 s2, {int(os.environ.get('TSWG', '0'))}")
    a(f"s_cbranch_scc0 {pfx}_SKIP_{idx}")
    a(f"s_cmp_eq_u32 {wavereg}, {wavesel}")
    a(f"s_cbranch_scc0 {pfx}_SKIP_{idx}")
    a("s_mov_b32 s94, 256")
    a("s_mov_b32 s95, 0x00020000")
    a("s_and_b32 s93, s93, 0xffff")
    a("v_mov_b32 v14, s90")
    a("v_mov_b32 v15, 0")
    a(f"buffer_store_dword v14, v15, s[92:95], 0 offen offset:{idx * 4}")
    a("s_waitcnt vmcnt(0)")
    a.label(f"{pfx}_SKIP_{idx}")

LT = []
def lstamp(a, k):
    if not TS: return
    a(f"s_memtime s[{60 + 2 * k}:{61 + 2 * k}]")
def ldump(a, n, wavesel, base, pfx, wavereg="s16"):
    if not TS: return
    a("s_load_dwordx2 s[92:93], s[0:1], 48")
    a("s_waitcnt lgkmcnt(0)")
    a(f"s_cmp_eq_u32 s2, {int(os.environ.get('TSWG', '0'))}")
    a(f"s_cbranch_scc0 {pfx}_LSKIP")
    a(f"s_cmp_eq_u32 {wavereg}, {wavesel}")
    a(f"s_cbranch_scc0 {pfx}_LSKIP")
    a("s_mov_b32 s94, 256")
    a("s_mov_b32 s95, 0x00020000")
    a("s_and_b32 s93, s93, 0xffff")
    a("v_mov_b32 v15, 0")
    for k in range(n):
        a(f"v_mov_b32 v14, s{60 + 2 * k}")
        a(f"buffer_store_dword v14, v15, s[92:95], 0 offen offset:{(base + k) * 4}")
        a("s_waitcnt vmcnt(0)")
    a.label(f"{pfx}_LSKIP")

def cost(ins):
    if ins.endswith(":"): return 0.25
    if ins.startswith("v_exp") or ins.startswith("v_rcp"): return 2.0
    if ins.startswith("s_"): return 0.25
    if ins.startswith("ds_"): return 0.5
    return 1.0

def interleave(a, mf, va, lead=0):
    ab = os.environ.get("ABL", "")
    if "V" in ab: va = [x for x in va if not x.startswith("v_") or x.startswith("v_add_u32") or x.startswith("v_cmp")]
    if "E" in ab: va = [x for x in va if not x.startswith("v_exp")]
    if "D" in ab: va = [x for x in va if not x.startswith("ds_")]
    if "M" in ab: mf = ["s_nop 0"] * len(mf)
    n = len(mf)
    tot = sum(cost(x) for x in va)
    slots = n - lead
    vi = 0; acc = 0.0
    for k, m in enumerate(mf):
        a(m)
        if k >= lead:
            target = tot * (k - lead + 1) / slots
            while vi < len(va) and (acc + cost(va[vi]) * 0.5 <= target or k == n - 1):
                a(va[vi]); acc += cost(va[vi]); vi += 1
    while vi < len(va):
        a(va[vi]); vi += 1

def merge(main, extra, upto=1.0):
    out = []
    n = max(1, int(len(main) * upto))
    ei = 0
    for k, m in enumerate(main):
        out.append(m)
        if k < n:
            tgt = len(extra) * (k + 1) // n
            while ei < tgt:
                out.append(extra[ei]); ei += 1
    out += extra[ei:]
    return out

import re
def _regs(tok):
    m = re.match(r"([av])\[(\d+):(\d+)\]", tok)
    if m: return {(m.group(1), r) for r in range(int(m.group(2)), int(m.group(3)) + 1)}
    m = re.match(r"([av])(\d+)$", tok)
    if m: return {(m.group(1), int(m.group(2)))}
    return set()
LOOKOLD = 4
def auto_lgkm(body):
    n = len(body)
    two = body + body
    out_waits = {}
    last_write = {}
    ds_seq = 0
    done_upto = -1
    for idx, ins in enumerate(two):
        t = ins.strip()
        if t.startswith("ds_read") or t.startswith("ds_bpermute"):
            d = t.split()[1].rstrip(",")
            for r in _regs(d): last_write[r] = ds_seq
            ds_seq += 1
        elif t.startswith("s_waitcnt") and "lgkmcnt(0)" in t:
            done_upto = ds_seq - 1
        elif t.startswith("v_mfma"):
            ops = [x.strip() for x in t.split(None, 1)[1].split(",")]
            need = -1
            for o in ops[1:3]:
                for r in _regs(o):
                    if r in last_write: need = max(need, last_write[r])
            if need > done_upto:
                cnt = 0
                for ins2 in two[idx + 1: idx + 60]:
                    t2 = ins2.strip()
                    if t2.startswith("v_mfma"):
                        cnt += 1
                        if cnt > 8: break
                        ops2 = [x.strip() for x in t2.split(None, 1)[1].split(",")]
                        for o in ops2[1:3]:
                            for r in _regs(o):
                                if r in last_write and last_write[r] <= ds_seq - 1 - LOOKOLD: need = max(need, last_write[r])
                N = ds_seq - 1 - need
                N = min(N, 15)
                done_upto = ds_seq - 1 - N
                if idx >= n: out_waits[idx - n] = N
                else: out_waits.setdefault(idx, None)
    res = []
    for i, ins in enumerate(body):
        if out_waits.get(i) is not None:
            res.append(f"s_waitcnt lgkmcnt({out_waits[i]})")
        res.append(ins)
    return res

class Buf:
    def __init__(self): self.l = []
    def __call__(self, s): self.l.append(s)

def place(mf, fills):
    gaps = [[] for _ in mf]
    ab = os.environ.get("ABL", "")
    for (st, en, L) in fills:
        if "V" in ab: L = [x for x in L if not x.startswith("v_") or x.startswith("v_add_u32") or x.startswith("v_cmp")]
        if "E" in ab: L = [x for x in L if not x.startswith("v_exp")]
        if "P" in ab: L = [x for x in L if not (x.startswith("v_") and not x.startswith("v_exp")) or x.startswith("v_add_u32") or x.startswith("v_cmp")]
        if "D" in ab: L = [x for x in L if not x.startswith("ds_")]
        if "K" in ab: L = [x for x in L if not x.startswith("ds_read_b128")]
        if "T" in ab: L = [x for x in L if not x.startswith("ds_read_b64_tr")]
        if "N" in ab: L = [x.replace("ds_read_b64_tr_b16", "ds_read_b64") for x in L]
        if not L: continue
        tot = sum(cost(x) for x in L); acc = 0.0
        for x in L:
            pos = st + int((acc + cost(x) * 0.5) / tot * (en - st)) if tot > 0 else st
            pos = min(pos, en - 1)
            gaps[pos].append(x); acc += cost(x)
    out = []
    for m, g in zip(mf, gaps):
        out.append(m); out += g
    return out

def tr_addr_setup(a, dst, base_imm):
    a("v_lshrrev_b32 v5, 2, v2")
    a("v_and_b32 v6, 3, v2")
    a("v_lshl_add_u32 v7, v1, 3, v5")
    a("v_lshlrev_b32 v7, 8, v7")
    a("v_lshl_add_u32 v7, v6, 6, v7")
    if base_imm:
        a(f"v_add_u32 v7, {base_imm}, v7")
    for ih in range(4):
        a(f"v_xor_b32 v9, {ih}, v5")
        a(f"v_lshl_add_u32 v{dst + ih}, v9, 4, v7")

def gen_attn(a):
    a.raw(".globl attn_kernel")
    a.raw(".p2align 8")
    a.raw(".type attn_kernel,@function")
    a.label("attn_kernel")
    a("s_cmp_ge_u32 s2, 256")
    a("s_cbranch_scc1 A_END")
    a("s_load_dwordx8 s[4:11], s[0:1], 0")
    a("s_load_dwordx2 s[12:13], s[0:1], 56")
    if os.environ.get("MAPB", "0") == "1":
        a("s_lshr_b32 s14, s2, 5")
        a("s_and_b32 s15, s2, 31")
    else:
        a("s_and_b32 s14, s2, 7")
        a("s_lshr_b32 s15, s2, 3")
    a("v_lshrrev_b32 v1, 6, v0")
    a("v_and_b32 v0, 63, v0")
    a("s_nop 0")
    a("v_readfirstlane_b32 s16, v1")
    a("s_waitcnt lgkmcnt(0)")
    a("s_mul_i32 s17, s14, 147456")
    srd(a, 20, 4, 5, 17, 147456)
    a("s_lshl_b32 s17, s14, 5")
    a("s_add_u32 s17, s17, s15")
    a("s_lshl_b32 s17, s17, 18")
    srd(a, 24, 6, 7, 17, 262144)
    srd(a, 28, 8, 9, 17, 262144)
    a("s_lshl_b32 s17, s15, 8")
    a("s_sub_u32 s18, 4194304, s17")
    srd(a, 32, 10, 11, 17, "s18")
    a("s_mul_i32 s18, s14, 1179648")
    a("s_lshl_b32 s17, s15, 12")
    a("s_add_u32 s18, s18, s17")
    a("s_sub_u32 s19, 1179648, s17")
    srd(a, 36, 12, 13, 18, "s19")
    if os.environ.get("ROT", "1") == "1":
        a("s_lshl_b32 s46, s14, 1")
        a("s_lshr_b32 s47, s15, 3")
        a("s_mul_i32 s47, s47, 5")
        a("s_add_u32 s46, s46, s47")
    else:
        a("s_mov_b32 s46, 0")
    stamp(a, 0, 0)
    stamp(a, 8, 3)
    a("v_lshrrev_b32 v1, 4, v0")
    a("v_and_b32 v2, 15, v0")
    a("s_cmp_eq_u32 s16, 3")
    a("s_cbranch_scc1 A_LOADER")

    WQL = 98304
    a("s_mul_i32 s17, s16, 49152")
    a("v_lshrrev_b32 v4, 2, v0")
    a("v_lshlrev_b32 v4, 10, v4")
    a("v_and_b32 v5, 3, v0")
    a("v_lshl_add_u32 v4, v5, 4, v4")
    a("v_add_u32 v10, s17, v4")
    a("v_add_u32 v11, 16384, v10")
    a("v_add_u32 v12, 32768, v10")
    XR = 64
    XF = 16
    AF = 96
    QTA = 0
    def qt(t, i): return QTA + (t * 8 + i) * 4
    XLA = int(os.environ.get("XLA", "5"))
    def xl(c):
        L = [f"s_add_u32 s47, s46, {c}", "s_and_b32 s47, s47, 15", "s_lshl_b32 s47, s47, 6"]
        for t in range(3):
            L.append(f"buffer_load_dwordx4 {vr(XR + c * 12 + t * 4, 4)}, v{10 + t}, s[20:23], s47 offen")
        return L
    for c in range(XLA):
        for x in xl(c): a(x)
    a("v_lshlrev_b32 v13, 4, v2")
    a("v_lshl_add_u32 v13, v1, 2, v13")
    TA = 56
    tr_addr_setup(a, TA, WQL)
    for i in range(96):
        a(f"v_accvgpr_write_b32 {ar(QTA + i)}, 0")
    def qreads(c):
        L = []
        if c < 16:
            for t in range(3):
                for e in range(4):
                    L.append(f"ds_bpermute_b32 v{XF + (c & 1) * 12 + t * 4 + e}, v13, v{XR + c * 12 + t * 4 + e}")
            for i in range(8):
                for hh in range(2):
                    L.append(f"ds_read_b64_tr_b16 {ar(AF + (c & 1) * 32 + i * 4 + hh * 2, 2)}, v{TA + (i >> 1)} offset:{(c & 7) * 8192 + hh * 1024 + (i & 1) * 8}")
        return L
    a(f"s_waitcnt vmcnt({3 * (XLA - 1)})")
    a("s_barrier")
    for x in qreads(0): a(x)
    for c in range(16):
        a(f"s_waitcnt lgkmcnt(0) vmcnt({max(0, 3 * (min(16, c + XLA) - (c + 2)))})")
        if TS and os.environ.get("QTS") == "1" and c < 14:
            lstamp(a, c)
        a("s_barrier")
        mf = [f"v_mfma_f32_16x16x32_bf16 {ar(qt(t, i), 4)}, {ar(AF + (c & 1) * 32 + i * 4, 4)}, {vr(XF + (c & 1) * 12 + t * 4, 4)}, {ar(qt(t, i), 4)}"
              for i in range(8) for t in range(3)]
        for x in place(mf, [(0, 20, qreads(c + 1)), (16, 24, xl(c + XLA) if c + XLA < 16 else [])]):
            a(x)
    a("s_nop 7")
    QF = 16
    def qf(t, s): return QF + (t * 4 + s) * 4
    for t in range(3):
        for s in range(4):
            for p in range(4):
                src = qt(t, 2 * s + (p >> 1)) + (p & 1) * 2
                a(f"v_accvgpr_read_b32 v8, {ar(src)}")
                a(f"v_accvgpr_read_b32 v9, {ar(src + 1)}")
                a(f"v_mul_f32 v8, {f32bits(C_SCALE):#x}, v8")
                a(f"v_mul_f32 v9, {f32bits(C_SCALE):#x}, v9")
                a(f"v_cvt_pk_bf16_f32 {vr(qf(t, s) + p)}, v8, v9")
    a("s_waitcnt vmcnt(0)")
    stamp(a, 1, 0)
    SB = 64; PB = 112
    MN = 136
    THR = 148; LS = 151; CL = 154
    KA = 160; VA = 164; KA0 = 172; VA0 = 176
    EB = 184
    TMP = 232
    OA = 0; KF = 96; VF = 160
    def sreg(t, kt): return SB + (t * 4 + kt) * 4
    def preg(t, u): return PB + (t * 2 + u) * 4
    def oreg(t, i): return OA + (t * 8 + i) * 4
    def kf(kt, s): return KF + (kt * 4 + s) * 4
    def vf(i, u): return VF + (i * 2 + u) * 4
    for t in range(3):
        for r in range(4):
            a(f"v_mov_b32 {vr(MN + t * 4 + r)}, 0")
        a(f"v_mov_b32 {vr(THR + t)}, -1.0")
        a(f"v_mov_b32 {vr(CL + t)}, 0xff800000")
        a(f"v_mov_b32 {vr(LS + t)}, 0")
    for i in range(96):
        a(f"v_accvgpr_write_b32 {ar(OA + i)}, 0")
    for i in range(64):
        a(f"v_accvgpr_write_b32 {ar(VF + i)}, 0")
    a("v_and_b32 v5, 3, v2")
    a("v_lshlrev_b32 v5, 2, v5")
    a("v_lshrrev_b32 v6, 2, v2")
    a("v_or_b32 v5, v5, v6")
    a("v_lshlrev_b32 v6, 2, v1")
    a("v_xor_b32 v5, v5, v6")
    for s in range(4):
        a(f"v_xor_b32 v6, {s}, v5")
        a(f"v_lshlrev_b32 v6, 4, v6")
        a(f"v_lshl_add_u32 {vr(KA0 + s)}, v2, 8, v6")
    a("v_lshrrev_b32 v5, 2, v2")
    a("v_and_b32 v6, 3, v2")
    a("v_lshl_add_u32 v7, v1, 2, v5")
    a("v_and_b32 v8, 7, v7")
    a("v_lshlrev_b32 v7, 8, v7")
    a("v_lshrrev_b32 v9, 1, v6")
    a("v_lshl_add_u32 v7, v9, 4, v7")
    a("v_and_b32 v9, 1, v6")
    a("v_lshl_add_u32 v7, v9, 3, v7")
    a("v_add_u32 v7, 16384, v7")
    for i in range(8):
        a(f"v_xor_b32 v9, {i}, v8")
        a(f"v_lshl_add_u32 {vr(VA0 + i)}, v9, 5, v7")
    a(f"s_mov_b32 s50, {f32bits(2.0 ** T_LOG2):#x}")

    def qk(t):
        L = []
        for kt in range(4):
            for s in range(4):
                c = vr(MN + t * 4, 4) if s == 0 else vr(sreg(t, kt), 4)
                L.append(f"v_mfma_f32_16x16x32_bf16 {vr(sreg(t, kt), 4)}, {ar(kf(kt, s), 4)}, {vr(qf(t, s), 4)}, {c}")
        return L
    def pv(t):
        L = []
        for u in range(2):
            for i in range(8):
                L.append(f"v_mfma_f32_16x16x32_bf16 {ar(oreg(t, i), 4)}, {ar(vf(i, u), 4)}, {vr(preg(t, u), 4)}, {ar(oreg(t, i), 4)}")
        return L
    def sumtree(t):
        E = EB + t * 16; T = TMP + t * 8
        return
    def sm1(t):
        S = sreg(t, 0); E = EB + t * 16; T = TMP + t * 8
        L = []
        for e in range(16):
            L.append(f"v_exp_f32 v{E+e}, v{S+e}")
            if e in (3, 5, 7, 9):
                k = (e - 3)
                L.append(f"v_add_f32 v{T + k // 2}, v{E+k}, v{E+k+1}")
        return L
    def sm2(t, tail=False):
        S = sreg(t, 0); E = EB + t * 16; T = TMP + t * 8
        L = []
        for k in (8, 10, 12, 14):
            L.append(f"v_add_f32 v{T + k // 2}, v{E+k}, v{E+k+1}")
        L += [f"v_add_f32 v{T}, v{T}, v{T+1}", f"v_add_f32 v{T+2}, v{T+2}, v{T+3}",
              f"v_add_f32 v{T+4}, v{T+4}, v{T+5}", f"v_add_f32 v{T+6}, v{T+6}, v{T+7}",
              f"v_add_f32 v{T}, v{T}, v{T+2}", f"v_add_f32 v{T+4}, v{T+4}, v{T+6}",
              f"v_add_f32 v{T}, v{T}, v{T+4}",
              f"v_cmp_gt_f32 vcc, v{T}, v{THR+t}",
              f"s_cbranch_vccnz A_SLOW_{t}{'T' if tail else ''}\nA_BACK_{t}{'T' if tail else ''}:",
              f"v_add_f32 v{LS+t}, v{LS+t}, v{T}"]
        for q in range(8):
            L.append(f"v_cvt_pk_bf16_f32 v{preg(t, 0) + q}, v{E+2*q}, v{E+2*q+1}")
        return L
    def kreads():
        return [f"ds_read_b128 {ar(kf(kt, s), 4)}, {vr(KA + s)} offset:{kt * 4096}" for kt in range(4) for s in range(4)]
    def vreads():
        return [f"ds_read_b64_tr_b16 {ar(vf(i, u) + hh * 2, 2)}, {vr(VA + i)} offset:{(2 * u + hh) * 4096}"
                for u in range(2) for i in range(8) for hh in range(2)]
    for e in range(16):
        a(f"v_mov_b32 v{EB + 32 + e}, 0")
    for e in range(8):
        a(f"v_mov_b32 v{TMP + 16 + e}, 0")
    a(f"v_mov_b32 v{THR + 2}, 1.0")
    a("s_mov_b32 s17, 0")
    a("s_mov_b32 s18, 0")
    for s in range(4):
        a(f"v_mov_b32 {vr(KA + s)}, {vr(KA0 + s)}")
    a("s_barrier")
    stamp(a, 2, 0)
    KR = kreads(); VR = vreads()
    for x in KR[:12]:
        a(x)
    a("s_waitcnt lgkmcnt(0)")
    vaddr = [f"v_add_u32 {vr(VA + i)}, s17, {vr(VA0 + i)}" for i in range(8)]
    kaddr = [f"v_add_u32 {vr(KA + s)}, s17, {vr(KA0 + s)}" for s in range(4)]
    body = []
    body += place(qk(0), [(0, 6, KR[12:16]), (0, 16, sm2(2) + ["s_cmp_eq_u32 s18, 0", "s_cbranch_scc1 A_FIX\nA_FIXBACK:"])])
    body += ["s_nop 1"]
    body += place(pv(2), [(0, 4, vaddr), (2, 16, sm1(0)), (8, 16, VR[:16])])
    body += place(qk(1), [(0, 16, sm2(0)), (0, 12, VR[16:])])
    body += ["s_add_u32 s17, s17, 32768", "s_cmp_eq_u32 s17, 163840", "s_cselect_b32 s17, 0, s17"]
    body += place(pv(0), [(0, 2, kaddr), (1, 16, sm1(1))])
    body += ["s_barrier"]
    body += place(qk(2), [(0, 16, sm2(1)), (4, 8, KR[0:4]), (8, 12, KR[4:8])])
    body += ["s_nop 1"]
    body += place(pv(1), [(2, 16, sm1(2)), (0, 8, KR[8:12])])
    body += ["s_add_u32 s18, s18, 1", "s_cmp_lt_u32 s18, 16"]
    body = auto_lgkm(body)
    a.label("A_LOOP")
    for x in body:
        a(x)
    a("s_cbranch_scc1 A_LOOP")
    stamp(a, 3, 0)
    a("s_nop 1")
    for x in sm2(2, True):
        a(x)
    a("s_nop 1")
    for x in pv(2):
        a(x)
    a("s_waitcnt lgkmcnt(0)")
    a("s_nop 15")
    a("s_mul_i32 s17, s16, 393216")
    a("v_lshrrev_b32 v5, 1, v1")
    a("v_lshlrev_b32 v5, 8, v5")
    a("v_lshl_add_u32 v5, v2, 4, v5")
    a("v_and_b32 v6, 1, v1")
    a("v_lshl_add_u32 v5, v6, 3, v5")
    a("v_add_u32 v5, s17, v5")
    a("s_mov_b32 s42, 0")
    a("s_mov_b32 s43, 131072")
    a("s_mov_b32 s44, 262144")
    for t in range(3):
        a(f"v_mov_b32 v{TMP}, v{LS+t}")
        a(f"v_mov_b32 v{TMP+1}, v{LS+t}")
        a("s_nop 1")
        a(f"v_permlane32_swap_b32 v{TMP}, v{TMP+1}")
        a(f"v_add_f32 v{TMP}, v{TMP}, v{TMP+1}")
        a(f"v_mov_b32 v{TMP+1}, v{TMP}")
        a("s_nop 1")
        a(f"v_permlane16_swap_b32 v{TMP}, v{TMP+1}")
        a(f"v_add_f32 v{TMP}, v{TMP}, v{TMP+1}")
        a(f"v_rcp_f32 v{TMP}, v{TMP}")
        a("s_nop 0")
        for i in range(8):
            for r in range(4):
                a(f"v_accvgpr_read_b32 v{TMP+2+r}, {ar(oreg(t, i) + r)}")
            for r in range(4):
                a(f"v_mul_f32 v{TMP+2+r}, v{TMP+2+r}, v{TMP}")
            d = 64 + (t * 8 + i) * 2
            a(f"v_cvt_pk_bf16_f32 v{d}, v{TMP+2}, v{TMP+3}")
            a(f"v_cvt_pk_bf16_f32 v{d+1}, v{TMP+4}, v{TMP+5}")
            a(f"buffer_store_dwordx2 {vr(d, 2)}, v5, s[36:39], s{42+t} offen offset:{(i & 1) * 512 + (i >> 1) * 1024}")
    if TS:
        a("s_waitcnt vmcnt(0)")
    stamp(a, 4, 0)
    if os.environ.get("QTS") == "1":
        ldump(a, 14, 0, 16, "TQ")
    a("s_branch A_END")
    a.label("A_FIX")
    a(f"v_mov_b32 v{THR + 2}, -1.0")
    a("s_branch A_FIXBACK")
    for (t, sfx) in ((0, ""), (1, ""), (2, ""), (2, "T")):
        S = sreg(t, 0); E = EB + t * 16; T = TMP + t * 8
        a.label(f"A_SLOW_{t}{sfx}")
        a(f"v_max3_f32 v{T}, v{S}, v{S+1}, v{S+2}")
        a(f"v_max3_f32 v{T+1}, v{S+3}, v{S+4}, v{S+5}")
        a(f"v_max3_f32 v{T+2}, v{S+6}, v{S+7}, v{S+8}")
        a(f"v_max3_f32 v{T+3}, v{S+9}, v{S+10}, v{S+11}")
        a(f"v_max3_f32 v{T}, v{T}, v{T+1}, v{T+2}")
        a(f"v_max3_f32 v{T+4}, v{S+12}, v{S+13}, v{S+14}")
        a(f"v_max3_f32 v{T}, v{T}, v{T+3}, v{S+15}")
        a(f"v_max_f32 v{T}, v{T}, v{T+4}")
        a(f"v_mov_b32 v{T+1}, v{T}")
        a("s_nop 1")
        a(f"v_permlane32_swap_b32 v{T}, v{T+1}")
        a(f"v_max_f32 v{T}, v{T}, v{T+1}")
        a(f"v_mov_b32 v{T+1}, v{T}")
        a("s_nop 1")
        a(f"v_permlane16_swap_b32 v{T}, v{T+1}")
        a(f"v_max3_f32 v{T}, v{T}, v{T+1}, v{CL+t}")
        a(f"v_mov_b32 v{CL+t}, 0")
        a(f"v_mov_b32 v{THR+t}, s50")
        a(f"v_sub_f32 v{T+1}, 0, v{T}")
        a(f"v_exp_f32 v{T+1}, v{T+1}")
        for r in range(4):
            a(f"v_sub_f32 v{MN + t * 4 + r}, v{MN + t * 4 + r}, v{T}")
        a(f"v_min_f32 v{T+1}, v{T+1}, s50")
        a(f"v_mul_f32 v{LS+t}, v{LS+t}, v{T+1}")
        a("s_nop 7")
        for i in range(32):
            a(f"v_accvgpr_read_b32 v{T+2+(i&3)}, {ar(oreg(t, 0) + i)}")
            a(f"v_mul_f32 v{T+2+(i&3)}, v{T+2+(i&3)}, v{T+1}")
            a(f"v_accvgpr_write_b32 {ar(oreg(t, 0) + i)}, v{T+2+(i&3)}")
        for e in range(16):
            a(f"v_sub_f32 v{E+e}, v{S+e}, v{T}")
        for e in range(16):
            a(f"v_exp_f32 v{E+e}, v{E+e}")
        a("s_nop 0")
        a(f"v_add_f32 v{T}, v{E}, v{E+1}")
        for e in range(2, 16):
            a(f"v_add_f32 v{T}, v{T}, v{E+e}")
        a(f"s_branch A_BACK_{t}{sfx}")

    a.label("A_LOADER")
    for q in range(4):
        a(f"v_lshlrev_b32 v3, 2, v1")
        a(f"v_or_b32 v3, {q}, v3")
        a(f"v_xor_b32 v3, v3, v2")
        a(f"v_lshlrev_b32 v3, 4, v3")
        a(f"v_lshl_add_u32 v{4+q}, v1, 8, v3")
    for p in range(2):
        a(f"v_or_b32 v3, {p << 2}, v1")
        a(f"v_lshlrev_b32 v3, 1, v3")
        a(f"v_xor_b32 v3, v3, v2")
        a(f"v_lshlrev_b32 v3, 4, v3")
        a(f"v_lshl_add_u32 v{8+p}, v1, 8, v3")
    def issue_stage(bar_every2):
        for kv in range(2):
            for G in range(4):
                a("s_waitcnt vmcnt(59)")
                a(f"s_add_u32 m0, s40, {kv * 16384 + G * 4096}")
                a(f"s_add_u32 s17, s41, {G * 4096}")
                for q in range(4):
                    vo = 4 + q if kv == 0 else 8 + (q & 1)
                    sr = "s[24:27]" if kv == 0 else "s[28:31]"
                    if os.environ.get("NOKV", "0") != "1":
                        a(f"buffer_load_dwordx4 v{vo}, {sr}, s17 offen offset:{q * 1024}{NT_FLAG} lds")
                if bar_every2 and (G & 1):
                    a("s_barrier")
        a("s_add_u32 s41, s41, 16384")
        a("s_add_u32 s40, s40, 32768")
        a("s_cmp_eq_u32 s40, 163840")
        a("s_cselect_b32 s40, 0, s40")
    a("v_xor_b32 v3, v2, v1")
    a("v_lshlrev_b32 v3, 4, v3")
    a("v_lshl_add_u32 v10, v1, 13, v3")
    ops = []
    def throttle(k):
        a(f"s_waitcnt vmcnt({63 - k})")
    def wq_chunk(c):
        for half in range(2):
            throttle(4)
            a(f"s_mov_b32 m0, {98304 + (c & 7) * 8192 + half * 4096}")
            a(f"s_add_u32 s47, s46, {c}")
            a("s_and_b32 s47, s47, 15")
            a("s_lshl_b32 s47, s47, 18")
            for q in range(4):
                n = half * 4 + q
                a(f"s_add_u32 s17, s47, {(4 * n) * 8192 - q * 1024}")
                if os.environ.get("NOWQ") != "1":
                    a(f"buffer_load_dwordx4 v10, s[32:35], s17 offen offset:{q * 1024} lds")
                    ops.append(("wq", c))
    def kv_group(st, kv, G):
        throttle(4)
        a(f"s_mov_b32 m0, {(st % NS) * 32768 + kv * 16384 + G * 4096}")
        a(f"s_mov_b32 s17, {st * 16384 + G * 4096}")
        for q in range(4):
            vo = 4 + q if kv == 0 else 8 + (q & 1)
            sr = "s[24:27]" if kv == 0 else "s[28:31]"
            if os.environ.get("NOKV", "0") != "1":
                a(f"buffer_load_dwordx4 v{vo}, {sr}, s17 offen offset:{q * 1024}{NT_FLAG} lds")
                ops.append(("kv", st))
    def wait_for(tag):
        last = max(i for i, o in enumerate(ops) if o == tag) if tag in ops else None
        if last is None: return
        n = len(ops) - 1 - last
        if n < 63: a(f"s_waitcnt vmcnt({n})")
    kvq = [(st, kv, G) for st in range(3) for kv in range(2) for G in range(4)]
    for c in range(3): wq_chunk(c)
    kv_group(*kvq.pop(0)); kv_group(*kvq.pop(0))
    for c in range(3, 8): wq_chunk(c)
    for c in range(17):
        if c < 16: wait_for(("wq", c))
        a("s_barrier")
        if c >= 1 and c + 7 < 16: wq_chunk(c + 7)
        for e in range(2):
            if kvq: kv_group(*kvq.pop(0))
    assert not kvq
    stamp(a, 9, 3)
    wait_for(("kv", 0))
    a("s_barrier")
    a("s_mov_b32 s40, 98304")
    a("s_mov_b32 s41, 49152")
    a("s_mov_b32 s42, 3")
    issue_stage(False)
    a("s_mov_b32 s42, 4")
    a("s_branch A_LENTRY")
    a.label("A_LLOOP")
    a("s_barrier")
    a.label("A_LENTRY")
    issue_stage(False)
    a("s_add_u32 s42, s42, 1")
    a("s_cmp_lt_u32 s42, 16")
    a("s_cbranch_scc1 A_LLOOP")
    stamp(a, 10, 3)
    a("s_barrier")
    a("s_barrier")
    a("s_waitcnt vmcnt(32)")
    a("s_barrier")
    a("s_waitcnt vmcnt(0)")
    stamp(a, 11, 3)
    a("s_barrier")
    a("s_barrier")
    a.label("A_END")
    a("s_endpgm")

def gen_oproj(a):
    a.raw(".globl oproj_kernel")
    a.raw(".p2align 8")
    a.raw(".type oproj_kernel,@function")
    a.label("oproj_kernel")
    a("s_cmp_ge_u32 s2, 256")
    a("s_cbranch_scc1 O_END")
    a("s_load_dwordx2 s[4:5], s[0:1], 32")
    a("s_load_dwordx2 s[8:9], s[0:1], 56")
    a("s_and_b32 s18, s2, 7")
    a("s_lshr_b32 s15, s2, 3")
    a("s_and_b32 s14, s15, 7")
    a("s_lshr_b32 s17, s15, 3")
    a("v_lshrrev_b32 v1, 6, v0")
    a("v_and_b32 v0, 63, v0")
    a("s_nop 0")
    a("v_readfirstlane_b32 s16, v1")
    a("s_waitcnt lgkmcnt(0)")
    a("s_lshl_b32 s19, s18, 19")
    a("s_lshl_b32 s20, s17, 8")
    a("s_add_u32 s19, s19, s20")
    a("s_sub_u32 s20, 524288, s20")
    srd(a, 24, 4, 5, 19, "s20")
    a("s_mul_i32 s19, s14, 1179648")
    a("s_lshl_b32 s20, s18, 14")
    a("s_add_u32 s19, s19, s20")
    a("s_sub_u32 s20, 1179648, s20")
    srd(a, 28, 8, 9, 19, "s20")
    a("s_lshl_b32 s19, s18, 3")
    a("s_add_u32 s19, s19, s14")
    a("s_mul_i32 s19, s19, 36")
    a("s_add_u32 s19, s19, s17")
    a("s_lshl_b32 s19, s19, 13")
    a(f"s_add_u32 s19, s19, {PART_OFF}")
    a("s_lshl_b32 s20, s17, 13")
    a("s_sub_u32 s20, 294912, s20")
    srd(a, 32, 8, 9, 19, "s20")
    stamp(a, 0, 0, pfx="TO")
    a("v_lshrrev_b32 v1, 4, v0")
    a("v_and_b32 v2, 15, v0")
    a("s_lshl_b32 s40, s14, 1")
    a("s_mul_i32 s41, s17, 5")
    a("s_add_u32 s40, s40, s41")
    a("v_xor_b32 v3, v2, v1")
    a("v_lshlrev_b32 v3, 4, v3")
    a("v_lshl_add_u32 v3, v1, 10, v3")
    a("s_lshl_b32 s19, s16, 13")
    a("v_add_u32 v3, s19, v3")
    a("v_add_u32 v12, 3072, v3")
    a("s_lshl_b32 s21, s16, 11")
    BF = 64
    a("s_mul_i32 s19, s16, 393216")
    a("v_lshlrev_b32 v4, 4, v0")
    a("v_add_u32 v4, s19, v4")
    a("v_add_u32 v10, 0x20000, v4")
    a("v_add_u32 v11, 0x40000, v4")
    vb = [4, 10, 11]
    def o_issue(c, withb):
        a(f"s_add_u32 s41, s40, {c}")
        a("s_and_b32 s41, s41, 15")
        a("s_lshl_b32 s42, s41, 15")
        a("s_lshl_b32 s43, s41, 10")
        a(f"s_add_u32 m0, s21, {c * 8192}")
        a("s_nop 0")
        a(f"buffer_load_dwordx4 v3, s[24:27], s42 offen lds")
        a(f"buffer_load_dwordx4 v12, s[24:27], s42 offen offset:1024 lds")
        if withb:
            for t in range(3):
                a(f"buffer_load_dwordx4 {ar(BF + (c * 3 + t) * 4, 4)}, v{vb[t]}, s[28:31], s43 offen")
    a("s_cmp_eq_u32 s16, 3")
    a("s_cbranch_scc1 O_LOADER")
    PRE = 10
    for c in range(PRE):
        o_issue(c, True)
    TA = 56
    tr_addr_setup(a, TA, 0)
    ACC = 64; AF = 0
    def acc(t, i): return ACC + (t * 8 + i) * 4
    for e in range(96):
        a(f"v_mov_b32 v{ACC + e}, 0")
    for ih in range(4):
        a(f"v_add_u32 v{60 + ih}, 0x10000, v{TA + ih}")
    issued = PRE
    for c in range(16):
        if c % 2 == 0:
            a(f"s_waitcnt vmcnt({5 * (issued - (c + 2))})")
            a("s_barrier")
            lstamp(a, c // 2)
            for e in range(2):
                if issued < 16:
                    o_issue(issued, True); issued += 1
        ab = AF + (c & 1) * 32
        base = TA if c < 8 else 60
        for i in range(8):
            for hh in range(2):
                a(f"ds_read_b64_tr_b16 {ar(ab + i * 4 + hh * 2, 2)}, v{base + (i >> 1)} offset:{(c & 7) * 8192 + hh * 1024 + (i & 1) * 8}")
        for i in range(8):
            a(f"s_waitcnt lgkmcnt({min(15, 14 - 2 * i)})")
            for t in range(3):
                a(f"v_mfma_f32_16x16x32_bf16 {vr(acc(t, i), 4)}, {ar(ab + i * 4, 4)}, {ar(BF + (c * 3 + t) * 4, 4)}, {vr(acc(t, i), 4)}")
    a("s_nop 15")
    stamp(a, 6, 0, pfx="TO")
    a("s_mul_i32 s19, s16, 98304")
    a("v_lshlrev_b32 v3, 4, v0")
    a("v_add_u32 v3, s19, v3")
    for t in range(3):
        a(f"s_mov_b32 s19, {t * 32768}")
        a(f"s_mov_b32 s20, {t * 32768 + 4096}")
        for i in range(8):
            a(f"buffer_store_dwordx4 {vr(acc(t, i), 4)}, v3, s[32:35], s{19 + (i >> 2)} offen offset:{(i & 3) * 1024}")
    if TS:
        a("s_waitcnt vmcnt(0)")
    stamp(a, 1, 0, pfx="TO")
    ldump(a, 8, 0, 16, "TO")
    a("s_branch O_END")
    a.label("O_LOADER")
    for c in range(16):
        o_issue(c, False)
    for c in range(0, 16, 2):
        a(f"s_waitcnt vmcnt({32 - 2 * (c + 2)})")
        a("s_barrier")
    a.label("O_END")
    a("s_endpgm")

def gen_ored(a):
    a.raw(".globl ored_kernel")
    a.raw(".p2align 8")
    a.raw(".type ored_kernel,@function")
    a.label("ored_kernel")
    a("s_cmp_ge_u32 s2, 576")
    a("s_cbranch_scc1 R_END")
    a("s_load_dwordx2 s[4:5], s[0:1], 40")
    a("s_load_dwordx2 s[8:9], s[0:1], 56")
    a("v_lshrrev_b32 v1, 6, v0")
    a("v_and_b32 v0, 63, v0")
    a("s_nop 0")
    a("v_readfirstlane_b32 s16, v1")
    a("s_waitcnt lgkmcnt(0)")
    a("s_lshl_b32 s17, s2, 2")
    a("s_add_u32 s17, s17, s16")
    a("s_and_b32 s18, s17, 7")
    a("s_lshr_b32 s19, s17, 3")
    a("s_lshl_b32 s20, s17, 10")
    a(f"s_add_u32 s21, s20, {PART_OFF}")
    a(f"s_sub_u32 s22, {8 * 288 * 8192}, s20")
    srd(a, 24, 8, 9, 21, "s22")
    a("v_lshlrev_b32 v3, 4, v0")
    for k in range(8):
        a(f"s_mov_b32 s{32 + k}, {k * 288 * 8192}")
        a(f"buffer_load_dwordx4 {vr(8 + k * 4, 4)}, v3, s[24:27], s{32 + k} offen")
    a("s_lshr_b32 s20, s19, 2")
    a("s_lshl_b32 s20, s20, 14")
    a("s_and_b32 s21, s19, 3")
    a("s_lshl_b32 s21, s21, 8")
    a("s_add_u32 s20, s20, s21")
    a("s_lshl_b32 s21, s18, 3")
    a("s_add_u32 s20, s20, s21")
    a(f"s_sub_u32 s22, 1179648, s20")
    srd(a, 28, 4, 5, 20, "s22")
    a("v_lshrrev_b32 v1, 4, v0")
    a("v_and_b32 v2, 15, v0")
    a("v_lshlrev_b32 v4, 10, v2")
    a("v_lshl_add_u32 v4, v1, 6, v4")
    for k in range(1, 8):
        a(f"s_waitcnt vmcnt({7 - k})")
        for r in range(4):
            a(f"v_add_f32 v{8 + r}, v{8 + r}, v{8 + k * 4 + r}")
    a("v_cvt_pk_bf16_f32 v6, v8, v9")
    a("v_cvt_pk_bf16_f32 v7, v10, v11")
    a("buffer_store_dwordx2 v[6:7], v4, s[28:31], 0 offen")
    a.label("R_END")
    a("s_endpgm")

def kd(a, name, nfv, accum, sgpr=96):
    a.raw(f".amdhsa_kernel {name}")
    a.raw(f"  .amdhsa_next_free_vgpr {nfv}")
    a.raw(f"  .amdhsa_next_free_sgpr {sgpr}")
    a.raw(f"  .amdhsa_accum_offset {accum}")
    a.raw("  .amdhsa_group_segment_fixed_size 0")
    a.raw("  .amdhsa_kernarg_size 64")
    a.raw("  .amdhsa_user_sgpr_count 2")
    a.raw("  .amdhsa_user_sgpr_kernarg_segment_ptr 1")
    a.raw("  .amdhsa_system_sgpr_workgroup_id_x 1")
    a.raw(".end_amdhsa_kernel")

def main():
    a = Asm()
    a.raw("; @launch kernel=attn_kernel grid=(256,1,1) block=(256,1,1) lds=163840")
    a.raw("; @launch kernel=oproj_kernel grid=(256,1,1) block=(256,1,1) lds=131072")
    a.raw("; @launch kernel=ored_kernel grid=(576,1,1) block=(256,1,1) lds=0")
    a.raw('.amdgcn_target "amdgcn-amd-amdhsa--gfx950"')
    a.raw(".text")
    gen_attn(a)
    gen_oproj(a)
    gen_ored(a)
    a.raw('.section .rodata,"a"')
    a.raw(".p2align 6")
    kd(a, "attn_kernel", 480, 256)
    a.raw(".p2align 6")
    kd(a, "oproj_kernel", 512, 256)
    a.raw(".p2align 6")
    kd(a, "ored_kernel", 40, 40)
    open(sys.argv[1], "w").write(a.text())

main()
```

```python
import math, sys, struct, os

NS = 5
STAGES = 16
T_LOG2 = 10.0
C_SCALE = (128 ** -0.5) * math.log2(math.e)
NT_FLAG = " nt" if os.environ.get("KV_NT", "1") == "1" else ""
PART_OFF = 16 * 1024 * 1024

def f32bits(x):
    return struct.unpack("<I", struct.pack("<f", x))[0]

class Asm:
    def __init__(self):
        self.l = []
    def __call__(self, s):
        if s.endswith(":") and "\n" not in s:
            self.l.append(s)
        else:
            self.l.append("    " + s)
    def label(self, s):
        self.l.append(s + ":")
    def raw(self, s):
        self.l.append(s)
    def text(self):
        return "\n".join(self.l) + "\n"

def vr(b, n=None):
    return f"v{b}" if n is None else f"v[{b}:{b+n-1}]"
def ar(b, n=None):
    return f"a{b}" if n is None else f"a[{b}:{b+n-1}]"

def srd(a, d, lo, hi, addlo_sgpr, nrec):
    a(f"s_add_u32 s{d}, s{lo}, s{addlo_sgpr}")
    a(f"s_addc_u32 s{d+1}, s{hi}, 0")
    a(f"s_and_b32 s{d+1}, s{d+1}, 0xffff")
    a(f"s_mov_b32 s{d+2}, {nrec}")
    a(f"s_mov_b32 s{d+3}, 0x00020000")

TS = os.environ.get("TS", "0") == "1"
def stamp(a, idx, wavesel, wavereg="s16", pfx="TS"):
    if not TS: return
    a("s_memtime s[90:91]")
    a("s_load_dwordx2 s[92:93], s[0:1], 48")
    a("s_waitcnt lgkmcnt(0)")
    a(f"s_cmp_eq_u32 s2, {int(os.environ.get('TSWG', '0'))}")
    a(f"s_cbranch_scc0 {pfx}_SKIP_{idx}")
    a(f"s_cmp_eq_u32 {wavereg}, {wavesel}")
    a(f"s_cbranch_scc0 {pfx}_SKIP_{idx}")
    a("s_mov_b32 s94, 256")
    a("s_mov_b32 s95, 0x00020000")
    a("s_and_b32 s93, s93, 0xffff")
    a("v_mov_b32 v14, s90")
    a("v_mov_b32 v15, 0")
    a(f"buffer_store_dword v14, v15, s[92:95], 0 offen offset:{idx * 4}")
    a("s_waitcnt vmcnt(0)")
    a.label(f"{pfx}_SKIP_{idx}")

LT = []
def lstamp(a, k):
    if not TS: return
    a(f"s_memtime s[{60 + 2 * k}:{61 + 2 * k}]")
def ldump(a, n, wavesel, base, pfx, wavereg="s16"):
    if not TS: return
    a("s_load_dwordx2 s[92:93], s[0:1], 48")
    a("s_waitcnt lgkmcnt(0)")
    a(f"s_cmp_eq_u32 s2, {int(os.environ.get('TSWG', '0'))}")
    a(f"s_cbranch_scc0 {pfx}_LSKIP")
    a(f"s_cmp_eq_u32 {wavereg}, {wavesel}")
    a(f"s_cbranch_scc0 {pfx}_LSKIP")
    a("s_mov_b32 s94, 256")
    a("s_mov_b32 s95, 0x00020000")
    a("s_and_b32 s93, s93, 0xffff")
    a("v_mov_b32 v15, 0")
    for k in range(n):
        a(f"v_mov_b32 v14, s{60 + 2 * k}")
        a(f"buffer_store_dword v14, v15, s[92:95], 0 offen offset:{(base + k) * 4}")
        a("s_waitcnt vmcnt(0)")
    a.label(f"{pfx}_LSKIP")

def rstamp(a, kid, slot, wavesel, wavereg="s16", pfx="RS"):
    if os.environ.get("RTS") != "1": return
    a("s_memrealtime s[90:91]")
    a("s_load_dwordx2 s[92:93], s[0:1], 56")
    a("s_waitcnt lgkmcnt(0)")
    a(f"s_cmp_eq_u32 {wavereg}, {wavesel}")
    a(f"s_cbranch_scc0 {pfx}_{kid}_{slot}")
    a(f"s_add_u32 s92, s92, {64 * 1024 * 1024 + kid * 65536}")
    a("s_addc_u32 s93, s93, 0")
    a("s_mov_b32 s94, 65536")
    a("s_mov_b32 s95, 0x00020000")
    a("s_and_b32 s93, s93, 0xffff")
    a("s_lshl_b32 s91, s2, 4")
    a("v_mov_b32 v14, s90")
    a("v_mov_b32 v15, s91")
    a(f"buffer_store_dword v14, v15, s[92:95], 0 offen offset:{slot * 4}")
    a("s_waitcnt vmcnt(0)")
    a.label(f"{pfx}_{kid}_{slot}")

def cost(ins):
    if ins.endswith(":"): return 0.25
    if ins.startswith("v_exp") or ins.startswith("v_rcp"): return 2.0
    if ins.startswith("s_"): return 0.25
    if ins.startswith("ds_"): return 0.5
    return 1.0

def interleave(a, mf, va, lead=0):
    ab = os.environ.get("ABL", "")
    if "V" in ab: va = [x for x in va if not x.startswith("v_") or x.startswith("v_add_u32") or x.startswith("v_cmp")]
    if "E" in ab: va = [x for x in va if not x.startswith("v_exp")]
    if "D" in ab: va = [x for x in va if not x.startswith("ds_")]
    if "M" in ab: mf = ["s_nop 0"] * len(mf)
    n = len(mf)
    tot = sum(cost(x) for x in va)
    slots = n - lead
    vi = 0; acc = 0.0
    for k, m in enumerate(mf):
        a(m)
        if k >= lead:
            target = tot * (k - lead + 1) / slots
            while vi < len(va) and (acc + cost(va[vi]) * 0.5 <= target or k == n - 1):
                a(va[vi]); acc += cost(va[vi]); vi += 1
    while vi < len(va):
        a(va[vi]); vi += 1

def merge(main, extra, upto=1.0):
    out = []
    n = max(1, int(len(main) * upto))
    ei = 0
    for k, m in enumerate(main):
        out.append(m)
        if k < n:
            tgt = len(extra) * (k + 1) // n
            while ei < tgt:
                out.append(extra[ei]); ei += 1
    out += extra[ei:]
    return out

import re
def _regs(tok):
    m = re.match(r"([av])\[(\d+):(\d+)\]", tok)
    if m: return {(m.group(1), r) for r in range(int(m.group(2)), int(m.group(3)) + 1)}
    m = re.match(r"([av])(\d+)$", tok)
    if m: return {(m.group(1), int(m.group(2)))}
    return set()
LOOKOLD = 4
def auto_lgkm(body):
    n = len(body)
    two = body + body
    out_waits = {}
    last_write = {}
    ds_seq = 0
    done_upto = -1
    for idx, ins in enumerate(two):
        t = ins.strip()
        if t.startswith("ds_read") or t.startswith("ds_bpermute"):
            d = t.split()[1].rstrip(",")
            for r in _regs(d): last_write[r] = ds_seq
            ds_seq += 1
        elif t.startswith("s_waitcnt") and "lgkmcnt(0)" in t:
            done_upto = ds_seq - 1
        elif t.startswith("v_mfma"):
            ops = [x.strip() for x in t.split(None, 1)[1].split(",")]
            need = -1
            for o in ops[1:3]:
                for r in _regs(o):
                    if r in last_write: need = max(need, last_write[r])
            if need > done_upto:
                cnt = 0
                for ins2 in two[idx + 1: idx + 60]:
                    t2 = ins2.strip()
                    if t2.startswith("v_mfma"):
                        cnt += 1
                        if cnt > 8: break
                        ops2 = [x.strip() for x in t2.split(None, 1)[1].split(",")]
                        for o in ops2[1:3]:
                            for r in _regs(o):
                                if r in last_write and last_write[r] <= ds_seq - 1 - LOOKOLD: need = max(need, last_write[r])
                N = ds_seq - 1 - need
                N = min(N, 15)
                done_upto = ds_seq - 1 - N
                if idx >= n: out_waits[idx - n] = N
                else: out_waits.setdefault(idx, None)
    res = []
    for i, ins in enumerate(body):
        if out_waits.get(i) is not None:
            res.append(f"s_waitcnt lgkmcnt({out_waits[i]})")
        res.append(ins)
    return res

class Buf:
    def __init__(self): self.l = []
    def __call__(self, s): self.l.append(s)

def place(mf, fills):
    gaps = [[] for _ in mf]
    ab = os.environ.get("ABL", "")
    for (st, en, L) in fills:
        if "V" in ab: L = [x for x in L if not x.startswith("v_") or x.startswith("v_add_u32") or x.startswith("v_cmp")]
        if "E" in ab: L = [x for x in L if not x.startswith("v_exp")]
        if "P" in ab: L = [x for x in L if not (x.startswith("v_") and not x.startswith("v_exp")) or x.startswith("v_add_u32") or x.startswith("v_cmp")]
        if "D" in ab: L = [x for x in L if not x.startswith("ds_")]
        if "K" in ab: L = [x for x in L if not x.startswith("ds_read_b128")]
        if "T" in ab: L = [x for x in L if not x.startswith("ds_read_b64_tr")]
        if "N" in ab: L = [x.replace("ds_read_b64_tr_b16", "ds_read_b64") for x in L]
        if not L: continue
        tot = sum(cost(x) for x in L); acc = 0.0
        for x in L:
            pos = st + int((acc + cost(x) * 0.5) / tot * (en - st)) if tot > 0 else st
            pos = min(pos, en - 1)
            gaps[pos].append(x); acc += cost(x)
    out = []
    for m, g in zip(mf, gaps):
        out.append(m); out += g
    return out

def tr_addr_setup(a, dst, base_imm):
    a("v_lshrrev_b32 v5, 2, v2")
    a("v_and_b32 v6, 3, v2")
    a("v_lshl_add_u32 v7, v1, 3, v5")
    a("v_lshlrev_b32 v7, 8, v7")
    a("v_lshl_add_u32 v7, v6, 6, v7")
    if base_imm:
        a(f"v_add_u32 v7, {base_imm}, v7")
    for ih in range(4):
        a(f"v_xor_b32 v9, {ih}, v5")
        a(f"v_lshl_add_u32 v{dst + ih}, v9, 4, v7")

def gen_attn(a):
    a.raw(".globl attn_kernel")
    a.raw(".p2align 8")
    a.raw(".type attn_kernel,@function")
    a.label("attn_kernel")
    a("s_cmp_ge_u32 s2, 256")
    a("s_cbranch_scc1 A_END")
    a("s_load_dwordx8 s[4:11], s[0:1], 0")
    a("s_load_dwordx2 s[12:13], s[0:1], 56")
    if os.environ.get("MAPB", "1") == "1":
        a("s_lshr_b32 s14, s2, 5")
        a("s_and_b32 s15, s2, 31")
    else:
        a("s_and_b32 s14, s2, 7")
        a("s_lshr_b32 s15, s2, 3")
    a("v_lshrrev_b32 v1, 6, v0")
    a("v_and_b32 v0, 63, v0")
    a("s_nop 0")
    a("v_readfirstlane_b32 s16, v1")
    a("s_waitcnt lgkmcnt(0)")
    a("s_mul_i32 s17, s14, 147456")
    srd(a, 20, 4, 5, 17, 147456)
    a("s_lshl_b32 s17, s14, 5")
    a("s_add_u32 s17, s17, s15")
    a("s_lshl_b32 s17, s17, 18")
    srd(a, 24, 6, 7, 17, 262144)
    srd(a, 28, 8, 9, 17, 262144)
    a("s_lshl_b32 s17, s15, 8")
    a("s_sub_u32 s18, 4194304, s17")
    srd(a, 32, 10, 11, 17, "s18")
    a("s_mul_i32 s18, s14, 1179648")
    a("s_lshl_b32 s17, s15, 12")
    a("s_add_u32 s18, s18, s17")
    a("s_sub_u32 s19, 1179648, s17")
    srd(a, 36, 12, 13, 18, "s19")
    if os.environ.get("ROT", "1") == "1":
        a("s_lshl_b32 s46, s14, 1")
        a("s_lshr_b32 s47, s15, 3")
        a("s_mul_i32 s47, s47, 5")
        a("s_add_u32 s46, s46, s47")
    else:
        a("s_mov_b32 s46, 0")
    stamp(a, 0, 0)
    stamp(a, 8, 3)
    rstamp(a, 0, 0, 0)
    a("v_lshrrev_b32 v1, 4, v0")
    a("v_and_b32 v2, 15, v0")
    a("s_cmp_eq_u32 s16, 3")
    a("s_cbranch_scc1 A_LOADER")

    WQL = 98304
    a("s_mul_i32 s17, s16, 49152")
    a("v_lshrrev_b32 v4, 2, v0")
    a("v_lshlrev_b32 v4, 10, v4")
    a("v_and_b32 v5, 3, v0")
    a("v_lshl_add_u32 v4, v5, 4, v4")
    a("v_add_u32 v10, s17, v4")
    a("v_add_u32 v11, 16384, v10")
    a("v_add_u32 v12, 32768, v10")
    XR = 64
    XF = 16
    AF = 96
    QTA = 0
    def qt(t, i): return QTA + (t * 8 + i) * 4
    XLA = int(os.environ.get("XLA", "4"))
    def xl(c):
        L = [f"s_add_u32 s47, s46, {c}", "s_and_b32 s47, s47, 15", "s_lshl_b32 s47, s47, 6"]
        for t in range(3):
            L.append(f"buffer_load_dwordx4 {vr(XR + c * 12 + t * 4, 4)}, v{10 + t}, s[20:23], s47 offen")
        return L
    for c in range(XLA):
        for x in xl(c): a(x)
    a("v_lshlrev_b32 v13, 4, v2")
    a("v_lshl_add_u32 v13, v1, 2, v13")
    TA = 56
    tr_addr_setup(a, TA, WQL)
    for i in range(96):
        a(f"v_accvgpr_write_b32 {ar(QTA + i)}, 0")
    def qreads(c):
        L = []
        if c < 16:
            for t in range(3):
                for e in range(4):
                    L.append(f"ds_bpermute_b32 v{XF + (c & 1) * 12 + t * 4 + e}, v13, v{XR + c * 12 + t * 4 + e}")
            for i in range(8):
                for hh in range(2):
                    L.append(f"ds_read_b64_tr_b16 {ar(AF + (c & 1) * 32 + i * 4 + hh * 2, 2)}, v{TA + (i >> 1)} offset:{(c & 7) * 8192 + hh * 1024 + (i & 1) * 8}")
        return L
    a(f"s_waitcnt vmcnt({3 * (XLA - 1)})")
    a("s_barrier")
    for x in qreads(0): a(x)
    for c in range(16):
        a(f"s_waitcnt lgkmcnt(0) vmcnt({max(0, 3 * (min(16, c + XLA) - (c + 2)))})")
        if TS and os.environ.get("QTS") == "1" and c < 14:
            lstamp(a, c)
        a("s_barrier")
        mf = [f"v_mfma_f32_16x16x32_bf16 {ar(qt(t, i), 4)}, {ar(AF + (c & 1) * 32 + i * 4, 4)}, {vr(XF + (c & 1) * 12 + t * 4, 4)}, {ar(qt(t, i), 4)}"
              for i in range(8) for t in range(3)]
        for x in place(mf, [(0, 20, qreads(c + 1)), (16, 24, xl(c + XLA) if c + XLA < 16 else [])]):
            a(x)
    a("s_nop 7")
    QF = 16
    def qf(t, s): return QF + (t * 4 + s) * 4
    for t in range(3):
        for s in range(4):
            for p in range(4):
                src = qt(t, 2 * s + (p >> 1)) + (p & 1) * 2
                a(f"v_accvgpr_read_b32 v8, {ar(src)}")
                a(f"v_accvgpr_read_b32 v9, {ar(src + 1)}")
                a(f"v_mul_f32 v8, {f32bits(C_SCALE):#x}, v8")
                a(f"v_mul_f32 v9, {f32bits(C_SCALE):#x}, v9")
                a(f"v_cvt_pk_bf16_f32 {vr(qf(t, s) + p)}, v8, v9")
    a("s_waitcnt vmcnt(0)")
    stamp(a, 1, 0)
    SB = 64; PB = 112
    MN = 136
    THR = 148; LS = 151; CL = 154
    KA = 160; VA = 164; KA0 = 172; VA0 = 176
    EB = 184
    TMP = 232
    OA = 0; KF = 96; VF = 160
    def sreg(t, kt): return SB + (t * 4 + kt) * 4
    def preg(t, u): return PB + (t * 2 + u) * 4
    def oreg(t, i): return OA + (t * 8 + i) * 4
    def kf(kt, s): return KF + (kt * 4 + s) * 4
    def vf(i, u): return VF + (i * 2 + u) * 4
    for t in range(3):
        for r in range(4):
            a(f"v_mov_b32 {vr(MN + t * 4 + r)}, 0")
        a(f"v_mov_b32 {vr(THR + t)}, -1.0")
        a(f"v_mov_b32 {vr(CL + t)}, 0xff800000")
        a(f"v_mov_b32 {vr(LS + t)}, 0")
    for i in range(96):
        a(f"v_accvgpr_write_b32 {ar(OA + i)}, 0")
    for i in range(64):
        a(f"v_accvgpr_write_b32 {ar(VF + i)}, 0")
    a("v_and_b32 v5, 3, v2")
    a("v_lshlrev_b32 v5, 2, v5")
    a("v_lshrrev_b32 v6, 2, v2")
    a("v_or_b32 v5, v5, v6")
    a("v_lshlrev_b32 v6, 2, v1")
    a("v_xor_b32 v5, v5, v6")
    for s in range(4):
        a(f"v_xor_b32 v6, {s}, v5")
        a(f"v_lshlrev_b32 v6, 4, v6")
        a(f"v_lshl_add_u32 {vr(KA0 + s)}, v2, 8, v6")
    a("v_lshrrev_b32 v5, 2, v2")
    a("v_and_b32 v6, 3, v2")
    a("v_lshl_add_u32 v7, v1, 2, v5")
    a("v_and_b32 v8, 7, v7")
    a("v_lshlrev_b32 v7, 8, v7")
    a("v_lshrrev_b32 v9, 1, v6")
    a("v_lshl_add_u32 v7, v9, 4, v7")
    a("v_and_b32 v9, 1, v6")
    a("v_lshl_add_u32 v7, v9, 3, v7")
    a("v_add_u32 v7, 16384, v7")
    for i in range(8):
        a(f"v_xor_b32 v9, {i}, v8")
        a(f"v_lshl_add_u32 {vr(VA0 + i)}, v9, 5, v7")
    a(f"s_mov_b32 s50, {f32bits(2.0 ** T_LOG2):#x}")

    def qk(t):
        L = []
        order = [(kt, s) for kt in range(4) for s in range(4)]
        if os.environ.get("QKO") == "1":
            order = [(kp * 2 + k2, s) for kp in range(2) for s in range(4) for k2 in range(2)]
        for (kt, s) in order:
            if True:
                c = vr(MN + t * 4, 4) if s == 0 else vr(sreg(t, kt), 4)
                L.append(f"v_mfma_f32_16x16x32_bf16 {vr(sreg(t, kt), 4)}, {ar(kf(kt, s), 4)}, {vr(qf(t, s), 4)}, {c}")
        return L
    def pv(t):
        L = []
        for u in range(2):
            for i in range(8):
                L.append(f"v_mfma_f32_16x16x32_bf16 {ar(oreg(t, i), 4)}, {ar(vf(i, u), 4)}, {vr(preg(t, u), 4)}, {ar(oreg(t, i), 4)}")
        return L
    def sumtree(t):
        E = EB + t * 16; T = TMP + t * 8
        return
    def sm1(t):
        S = sreg(t, 0); E = EB + t * 16; T = TMP + t * 8
        L = []
        for e in range(16):
            L.append(f"v_exp_f32 v{E+e}, v{S+e}")
            if e in (3, 5, 7, 9):
                k = (e - 3)
                L.append(f"v_add_f32 v{T + k // 2}, v{E+k}, v{E+k+1}")
        return L
    def sm2(t, tail=False):
        S = sreg(t, 0); E = EB + t * 16; T = TMP + t * 8
        L = []
        for k in (8, 10, 12, 14):
            L.append(f"v_add_f32 v{T + k // 2}, v{E+k}, v{E+k+1}")
        L += [f"v_add_f32 v{T}, v{T}, v{T+1}", f"v_add_f32 v{T+2}, v{T+2}, v{T+3}",
              f"v_add_f32 v{T+4}, v{T+4}, v{T+5}", f"v_add_f32 v{T+6}, v{T+6}, v{T+7}",
              f"v_add_f32 v{T}, v{T}, v{T+2}", f"v_add_f32 v{T+4}, v{T+4}, v{T+6}",
              f"v_add_f32 v{T}, v{T}, v{T+4}",
              f"v_cmp_gt_f32 vcc, v{T}, v{THR+t}",
              f"s_cbranch_vccnz A_SLOW_{t}{'T' if tail else ''}\nA_BACK_{t}{'T' if tail else ''}:",
              f"v_add_f32 v{LS+t}, v{LS+t}, v{T}"]
        for q in range(8):
            L.append(f"v_cvt_pk_bf16_f32 v{preg(t, 0) + q}, v{E+2*q}, v{E+2*q+1}")
        return L
    def kreads():
        return [f"ds_read_b128 {ar(kf(kt, s), 4)}, {vr(KA + s)} offset:{kt * 4096}" for kt in range(4) for s in range(4)]
    def vreads():
        return [f"ds_read_b64_tr_b16 {ar(vf(i, u) + hh * 2, 2)}, {vr(VA + i)} offset:{(2 * u + hh) * 4096}"
                for u in range(2) for i in range(8) for hh in range(2)]
    for e in range(16):
        a(f"v_mov_b32 v{EB + 32 + e}, 0")
    for e in range(8):
        a(f"v_mov_b32 v{TMP + 16 + e}, 0")
    a(f"v_mov_b32 v{THR + 2}, 1.0")
    a("s_mov_b32 s17, 0")
    a("s_mov_b32 s18, 0")
    for s in range(4):
        a(f"v_mov_b32 {vr(KA + s)}, {vr(KA0 + s)}")
    a("s_barrier")
    stamp(a, 2, 0)
    KR = kreads(); VR = vreads()
    for x in KR[:12]:
        a(x)
    a("s_waitcnt lgkmcnt(0)")
    vaddr = [f"v_add_u32 {vr(VA + i)}, s17, {vr(VA0 + i)}" for i in range(8)]
    kaddr = [f"v_add_u32 {vr(KA + s)}, s17, {vr(KA0 + s)}" for s in range(4)]
    body = []
    body += place(qk(0), [(0, 6, KR[12:16]), (0, 16, sm2(2) + ["s_cmp_eq_u32 s18, 0", "s_cbranch_scc1 A_FIX\nA_FIXBACK:"])])
    body += ["s_nop 1"]
    body += place(pv(2), [(0, 4, vaddr), (2, 16, sm1(0)), (8, 16, VR[:16])])
    body += place(qk(1), [(0, 16, sm2(0)), (0, 12, VR[16:])])
    body += ["s_add_u32 s17, s17, 32768", "s_cmp_eq_u32 s17, 163840", "s_cselect_b32 s17, 0, s17"]
    body += place(pv(0), [(0, 2, kaddr), (1, 16, sm1(1))])
    if os.environ.get("NOBAR") != "1":
        body += ["s_barrier"]
    body += place(qk(2), [(0, 16, sm2(1)), (4, 8, KR[0:4]), (8, 12, KR[4:8])])
    body += ["s_nop 1"]
    body += place(pv(1), [(2, 16, sm1(2)), (0, 8, KR[8:12])])
    body += ["s_add_u32 s18, s18, 1", "s_cmp_lt_u32 s18, 16"]
    body = auto_lgkm(body)
    a.label("A_LOOP")
    for x in body:
        a(x)
    a("s_cbranch_scc1 A_LOOP")
    stamp(a, 3, 0)
    a("s_nop 1")
    for x in sm2(2, True):
        a(x)
    a("s_nop 1")
    for x in pv(2):
        a(x)
    a("s_waitcnt lgkmcnt(0)")
    a("s_nop 15")
    a("s_mul_i32 s17, s16, 393216")
    a("v_lshrrev_b32 v5, 1, v1")
    a("v_lshlrev_b32 v5, 8, v5")
    a("v_lshl_add_u32 v5, v2, 4, v5")
    a("v_and_b32 v6, 1, v1")
    a("v_lshl_add_u32 v5, v6, 3, v5")
    a("v_add_u32 v5, s17, v5")
    a("s_mov_b32 s42, 0")
    a("s_mov_b32 s43, 131072")
    a("s_mov_b32 s44, 262144")
    for t in range(3):
        a(f"v_mov_b32 v{TMP}, v{LS+t}")
        a(f"v_mov_b32 v{TMP+1}, v{LS+t}")
        a("s_nop 1")
        a(f"v_permlane32_swap_b32 v{TMP}, v{TMP+1}")
        a(f"v_add_f32 v{TMP}, v{TMP}, v{TMP+1}")
        a(f"v_mov_b32 v{TMP+1}, v{TMP}")
        a("s_nop 1")
        a(f"v_permlane16_swap_b32 v{TMP}, v{TMP+1}")
        a(f"v_add_f32 v{TMP}, v{TMP}, v{TMP+1}")
        a(f"v_rcp_f32 v{TMP}, v{TMP}")
        a("s_nop 0")
        for i in range(8):
            for r in range(4):
                a(f"v_accvgpr_read_b32 v{TMP+2+r}, {ar(oreg(t, i) + r)}")
            for r in range(4):
                a(f"v_mul_f32 v{TMP+2+r}, v{TMP+2+r}, v{TMP}")
            d = 64 + (t * 8 + i) * 2
            a(f"v_cvt_pk_bf16_f32 v{d}, v{TMP+2}, v{TMP+3}")
            a(f"v_cvt_pk_bf16_f32 v{d+1}, v{TMP+4}, v{TMP+5}")
            a(f"buffer_store_dwordx2 {vr(d, 2)}, v5, s[36:39], s{42+t} offen offset:{(i & 1) * 512 + (i >> 1) * 1024}")
    if TS:
        a("s_waitcnt vmcnt(0)")
    stamp(a, 4, 0)
    if os.environ.get("RTS") == "1": a("s_waitcnt vmcnt(0)")
    rstamp(a, 0, 1, 0)
    if os.environ.get("QTS") == "1":
        ldump(a, 14, 0, 16, "TQ")
    a("s_branch A_END")
    a.label("A_FIX")
    a(f"v_mov_b32 v{THR + 2}, -1.0")
    a("s_branch A_FIXBACK")
    for (t, sfx) in ((0, ""), (1, ""), (2, ""), (2, "T")):
        S = sreg(t, 0); E = EB + t * 16; T = TMP + t * 8
        a.label(f"A_SLOW_{t}{sfx}")
        a(f"v_max3_f32 v{T}, v{S}, v{S+1}, v{S+2}")
        a(f"v_max3_f32 v{T+1}, v{S+3}, v{S+4}, v{S+5}")
        a(f"v_max3_f32 v{T+2}, v{S+6}, v{S+7}, v{S+8}")
        a(f"v_max3_f32 v{T+3}, v{S+9}, v{S+10}, v{S+11}")
        a(f"v_max3_f32 v{T}, v{T}, v{T+1}, v{T+2}")
        a(f"v_max3_f32 v{T+4}, v{S+12}, v{S+13}, v{S+14}")
        a(f"v_max3_f32 v{T}, v{T}, v{T+3}, v{S+15}")
        a(f"v_max_f32 v{T}, v{T}, v{T+4}")
        a(f"v_mov_b32 v{T+1}, v{T}")
        a("s_nop 1")
        a(f"v_permlane32_swap_b32 v{T}, v{T+1}")
        a(f"v_max_f32 v{T}, v{T}, v{T+1}")
        a(f"v_mov_b32 v{T+1}, v{T}")
        a("s_nop 1")
        a(f"v_permlane16_swap_b32 v{T}, v{T+1}")
        a(f"v_max3_f32 v{T}, v{T}, v{T+1}, v{CL+t}")
        a(f"v_mov_b32 v{CL+t}, 0")
        a(f"v_mov_b32 v{THR+t}, s50")
        a(f"v_sub_f32 v{T+1}, 0, v{T}")
        a(f"v_exp_f32 v{T+1}, v{T+1}")
        for r in range(4):
            a(f"v_sub_f32 v{MN + t * 4 + r}, v{MN + t * 4 + r}, v{T}")
        a(f"v_min_f32 v{T+1}, v{T+1}, s50")
        a(f"v_mul_f32 v{LS+t}, v{LS+t}, v{T+1}")
        a("s_nop 7")
        for i in range(32):
            a(f"v_accvgpr_read_b32 v{T+2+(i&3)}, {ar(oreg(t, 0) + i)}")
            a(f"v_mul_f32 v{T+2+(i&3)}, v{T+2+(i&3)}, v{T+1}")
            a(f"v_accvgpr_write_b32 {ar(oreg(t, 0) + i)}, v{T+2+(i&3)}")
        for e in range(16):
            a(f"v_sub_f32 v{E+e}, v{S+e}, v{T}")
        for e in range(16):
            a(f"v_exp_f32 v{E+e}, v{E+e}")
        a("s_nop 0")
        a(f"v_add_f32 v{T}, v{E}, v{E+1}")
        for e in range(2, 16):
            a(f"v_add_f32 v{T}, v{T}, v{E+e}")
        a(f"s_branch A_BACK_{t}{sfx}")

    a.label("A_LOADER")
    for q in range(4):
        a(f"v_lshlrev_b32 v3, 2, v1")
        a(f"v_or_b32 v3, {q}, v3")
        a(f"v_xor_b32 v3, v3, v2")
        a(f"v_lshlrev_b32 v3, 4, v3")
        a(f"v_lshl_add_u32 v{4+q}, v1, 8, v3")
    for p in range(2):
        a(f"v_or_b32 v3, {p << 2}, v1")
        a(f"v_lshlrev_b32 v3, 1, v3")
        a(f"v_xor_b32 v3, v3, v2")
        a(f"v_lshlrev_b32 v3, 4, v3")
        a(f"v_lshl_add_u32 v{8+p}, v1, 8, v3")
    def issue_stage(bar_every2):
        for kv in range(2):
            for G in range(4):
                a("s_waitcnt vmcnt(59)")
                a(f"s_add_u32 m0, s40, {kv * 16384 + G * 4096}")
                a(f"s_add_u32 s17, s41, {G * 4096}")
                for q in range(4):
                    vo = 4 + q if kv == 0 else 8 + (q & 1)
                    sr = "s[24:27]" if kv == 0 else "s[28:31]"
                    if os.environ.get("NOKV", "0") != "1":
                        a(f"buffer_load_dwordx4 v{vo}, {sr}, s17 offen offset:{q * 1024}{NT_FLAG} lds")
                if bar_every2 and (G & 1):
                    a("s_barrier")
        a("s_add_u32 s41, s41, 16384")
        a("s_add_u32 s40, s40, 32768")
        a("s_cmp_eq_u32 s40, 163840")
        a("s_cselect_b32 s40, 0, s40")
    a("v_xor_b32 v3, v2, v1")
    a("v_lshlrev_b32 v3, 4, v3")
    a("v_lshl_add_u32 v10, v1, 13, v3")
    ops = []
    def throttle(k):
        a(f"s_waitcnt vmcnt({63 - k})")
    def wq_chunk(c):
        for half in range(2):
            throttle(4)
            a(f"s_mov_b32 m0, {98304 + (c & 7) * 8192 + half * 4096}")
            a(f"s_add_u32 s47, s46, {c}")
            a("s_and_b32 s47, s47, 15")
            a("s_lshl_b32 s47, s47, 18")
            for q in range(4):
                n = half * 4 + q
                a(f"s_add_u32 s17, s47, {(4 * n) * 8192 - q * 1024}")
                if os.environ.get("NOWQ") != "1":
                    a(f"buffer_load_dwordx4 v10, s[32:35], s17 offen offset:{q * 1024} lds")
                    ops.append(("wq", c))
    def kv_group(st, kv, G):
        throttle(4)
        a(f"s_mov_b32 m0, {(st % NS) * 32768 + kv * 16384 + G * 4096}")
        a(f"s_mov_b32 s17, {st * 16384 + G * 4096}")
        for q in range(4):
            vo = 4 + q if kv == 0 else 8 + (q & 1)
            sr = "s[24:27]" if kv == 0 else "s[28:31]"
            if os.environ.get("NOKV", "0") != "1":
                a(f"buffer_load_dwordx4 v{vo}, {sr}, s17 offen offset:{q * 1024}{NT_FLAG} lds")
                ops.append(("kv", st))
    def wait_for(tag):
        last = max(i for i, o in enumerate(ops) if o == tag) if tag in ops else None
        if last is None: return
        n = len(ops) - 1 - last
        if n < 63: a(f"s_waitcnt vmcnt({n})")
    kvq = [(st, kv, G) for st in range(3) for kv in range(2) for G in range(4)]
    KVS = int(os.environ.get("KVS", "9")); KVR = int(os.environ.get("KVR", "3"))
    for c in range(3): wq_chunk(c)
    if KVS == 0:
        kv_group(*kvq.pop(0)); kv_group(*kvq.pop(0))
    for c in range(3, 8): wq_chunk(c)
    for c in range(17):
        if c < 16: wait_for(("wq", c))
        a("s_barrier")
        if c >= 1 and c + 7 < 16: wq_chunk(c + 7)
        if c >= KVS:
            for e in range(KVR):
                if kvq: kv_group(*kvq.pop(0))
    while kvq: kv_group(*kvq.pop(0))
    stamp(a, 9, 3)
    wait_for(("kv", 0))
    a("s_barrier")
    if os.environ.get("NOBAR") == "1":
        a("s_branch A_END")
    a("s_mov_b32 s40, 98304")
    a("s_mov_b32 s41, 49152")
    a("s_mov_b32 s42, 3")
    issue_stage(False)
    a("s_mov_b32 s42, 4")
    a("s_branch A_LENTRY")
    a.label("A_LLOOP")
    a("s_barrier")
    a.label("A_LENTRY")
    issue_stage(False)
    a("s_add_u32 s42, s42, 1")
    a("s_cmp_lt_u32 s42, 16")
    a("s_cbranch_scc1 A_LLOOP")
    stamp(a, 10, 3)
    a("s_barrier")
    a("s_barrier")
    a("s_waitcnt vmcnt(32)")
    a("s_barrier")
    a("s_waitcnt vmcnt(0)")
    stamp(a, 11, 3)
    a("s_barrier")
    a("s_barrier")
    a.label("A_END")
    a("s_endpgm")

def gen_oproj(a):
    a.raw(".globl oproj_kernel")
    a.raw(".p2align 8")
    a.raw(".type oproj_kernel,@function")
    a.label("oproj_kernel")
    a("s_cmp_ge_u32 s2, 256")
    a("s_cbranch_scc1 O_END")
    a("s_load_dwordx2 s[4:5], s[0:1], 32")
    a("s_load_dwordx2 s[8:9], s[0:1], 56")
    a("s_and_b32 s18, s2, 7")
    a("s_lshr_b32 s15, s2, 3")
    a("s_and_b32 s14, s15, 7")
    a("s_lshr_b32 s17, s15, 3")
    a("v_lshrrev_b32 v1, 6, v0")
    a("v_and_b32 v0, 63, v0")
    a("s_nop 0")
    a("v_readfirstlane_b32 s16, v1")
    a("s_waitcnt lgkmcnt(0)")
    a("s_lshl_b32 s19, s18, 19")
    a("s_lshl_b32 s20, s17, 8")
    a("s_add_u32 s19, s19, s20")
    a("s_sub_u32 s20, 524288, s20")
    srd(a, 24, 4, 5, 19, "s20")
    a("s_mul_i32 s19, s14, 1179648")
    a("s_lshl_b32 s20, s18, 14")
    a("s_add_u32 s19, s19, s20")
    a("s_sub_u32 s20, 1179648, s20")
    srd(a, 28, 8, 9, 19, "s20")
    a("s_lshl_b32 s19, s18, 3")
    a("s_add_u32 s19, s19, s14")
    a("s_mul_i32 s19, s19, 36")
    a("s_add_u32 s19, s19, s17")
    a("s_lshl_b32 s19, s19, 13")
    a(f"s_add_u32 s19, s19, {PART_OFF}")
    a("s_lshl_b32 s20, s17, 13")
    a("s_sub_u32 s20, 294912, s20")
    srd(a, 32, 8, 9, 19, "s20")
    stamp(a, 0, 0, pfx="TO")
    rstamp(a, 1, 0, 0)
    a("v_lshrrev_b32 v1, 4, v0")
    a("v_and_b32 v2, 15, v0")
    a("s_lshl_b32 s40, s14, 1")
    a("s_mul_i32 s41, s17, 5")
    a("s_add_u32 s40, s40, s41")
    a("v_xor_b32 v3, v2, v1")
    a("v_lshlrev_b32 v3, 4, v3")
    a("v_lshl_add_u32 v3, v1, 10, v3")
    a("s_lshl_b32 s19, s16, 13")
    a("v_add_u32 v3, s19, v3")
    a("v_add_u32 v12, 3072, v3")
    a("s_lshl_b32 s21, s16, 11")
    BF = 64
    a("s_mul_i32 s19, s16, 393216")
    a("v_lshlrev_b32 v4, 4, v0")
    a("v_add_u32 v4, s19, v4")
    a("v_add_u32 v10, 0x20000, v4")
    a("v_add_u32 v11, 0x40000, v4")
    vb = [4, 10, 11]
    def o_issue(c, withb):
        a(f"s_add_u32 s41, s40, {c}")
        a("s_and_b32 s41, s41, 15")
        a("s_lshl_b32 s42, s41, 15")
        a("s_lshl_b32 s43, s41, 10")
        a(f"s_add_u32 m0, s21, {c * 8192}")
        a("s_nop 0")
        a(f"buffer_load_dwordx4 v3, s[24:27], s42 offen lds")
        a(f"buffer_load_dwordx4 v12, s[24:27], s42 offen offset:1024 lds")
        if withb:
            for t in range(3):
                a(f"buffer_load_dwordx4 {ar(BF + (c * 3 + t) * 4, 4)}, v{vb[t]}, s[28:31], s43 offen")
    a("s_cmp_eq_u32 s16, 3")
    a("s_cbranch_scc1 O_LOADER")
    PRE = int(os.environ.get('PRE', '4'))
    for c in range(PRE):
        o_issue(c, True)
    TA = 56
    tr_addr_setup(a, TA, 0)
    ACC = 64; AF = 0
    def acc(t, i): return ACC + (t * 8 + i) * 4
    for e in range(96):
        a(f"v_mov_b32 v{ACC + e}, 0")
    for ih in range(4):
        a(f"v_add_u32 v{60 + ih}, 0x10000, v{TA + ih}")
    issued = PRE
    for c in range(16):
        if c % 2 == 0:
            a(f"s_waitcnt vmcnt({5 * (issued - (c + 2))})")
            a("s_barrier")
            lstamp(a, c // 2)
            for e in range(2):
                if issued < 16:
                    o_issue(issued, True); issued += 1
        ab = AF + (c & 1) * 32
        base = TA if c < 8 else 60
        for i in range(8):
            for hh in range(2):
                a(f"ds_read_b64_tr_b16 {ar(ab + i * 4 + hh * 2, 2)}, v{base + (i >> 1)} offset:{(c & 7) * 8192 + hh * 1024 + (i & 1) * 8}")
        for i in range(8):
            a(f"s_waitcnt lgkmcnt({min(15, 14 - 2 * i)})")
            for t in range(3):
                a(f"v_mfma_f32_16x16x32_bf16 {vr(acc(t, i), 4)}, {ar(ab + i * 4, 4)}, {ar(BF + (c * 3 + t) * 4, 4)}, {vr(acc(t, i), 4)}")
    a("s_nop 15")
    stamp(a, 6, 0, pfx="TO")
    a("s_mul_i32 s19, s16, 98304")
    a("v_lshlrev_b32 v3, 4, v0")
    a("v_add_u32 v3, s19, v3")
    for t in range(3):
        a(f"s_mov_b32 s19, {t * 32768}")
        a(f"s_mov_b32 s20, {t * 32768 + 4096}")
        for i in range(8):
            a(f"buffer_store_dwordx4 {vr(acc(t, i), 4)}, v3, s[32:35], s{19 + (i >> 2)} offen offset:{(i & 3) * 1024}")
    if TS:
        a("s_waitcnt vmcnt(0)")
    stamp(a, 1, 0, pfx="TO")
    if os.environ.get("RTS") == "1": a("s_waitcnt vmcnt(0)")
    rstamp(a, 1, 1, 0)
    ldump(a, 8, 0, 16, "TO")
    a("s_branch O_END")
    a.label("O_LOADER")
    for c in range(16):
        o_issue(c, False)
    for c in range(0, 16, 2):
        a(f"s_waitcnt vmcnt({32 - 2 * (c + 2)})")
        a("s_barrier")
    a.label("O_END")
    a("s_endpgm")

def gen_ored(a):
    a.raw(".globl ored_kernel")
    a.raw(".p2align 8")
    a.raw(".type ored_kernel,@function")
    a.label("ored_kernel")
    a("s_cmp_ge_u32 s2, 576")
    a("s_cbranch_scc1 R_END")
    a("s_load_dwordx2 s[4:5], s[0:1], 40")
    a("s_load_dwordx2 s[8:9], s[0:1], 56")
    a("v_lshrrev_b32 v1, 6, v0")
    a("v_and_b32 v0, 63, v0")
    a("s_nop 0")
    a("v_readfirstlane_b32 s16, v1")
    a("s_waitcnt lgkmcnt(0)")
    rstamp(a, 2, 0, 0)
    a("s_lshl_b32 s17, s2, 2")
    a("s_add_u32 s17, s17, s16")
    a("s_and_b32 s18, s17, 7")
    a("s_lshr_b32 s19, s17, 3")
    a("s_lshl_b32 s20, s17, 10")
    a(f"s_add_u32 s21, s20, {PART_OFF}")
    a(f"s_sub_u32 s22, {8 * 288 * 8192}, s20")
    srd(a, 24, 8, 9, 21, "s22")
    a("v_lshlrev_b32 v3, 4, v0")
    for k in range(8):
        a(f"s_mov_b32 s{32 + k}, {k * 288 * 8192}")
        a(f"buffer_load_dwordx4 {vr(8 + k * 4, 4)}, v3, s[24:27], s{32 + k} offen")
    a("s_lshr_b32 s20, s19, 2")
    a("s_lshl_b32 s20, s20, 14")
    a("s_and_b32 s21, s19, 3")
    a("s_lshl_b32 s21, s21, 8")
    a("s_add_u32 s20, s20, s21")
    a("s_lshl_b32 s21, s18, 3")
    a("s_add_u32 s20, s20, s21")
    a(f"s_sub_u32 s22, 1179648, s20")
    srd(a, 28, 4, 5, 20, "s22")
    a("v_lshrrev_b32 v1, 4, v0")
    a("v_and_b32 v2, 15, v0")
    a("v_lshlrev_b32 v4, 10, v2")
    a("v_lshl_add_u32 v4, v1, 6, v4")
    for k in range(1, 8):
        a(f"s_waitcnt vmcnt({7 - k})")
        for r in range(4):
            a(f"v_add_f32 v{8 + r}, v{8 + r}, v{8 + k * 4 + r}")
    a("v_cvt_pk_bf16_f32 v6, v8, v9")
    a("v_cvt_pk_bf16_f32 v7, v10, v11")
    a("buffer_store_dwordx2 v[6:7], v4, s[28:31], 0 offen")
    if os.environ.get("RTS") == "1": a("s_waitcnt vmcnt(0)")
    rstamp(a, 2, 1, 0)
    a.label("R_END")
    a("s_endpgm")

def kd(a, name, nfv, accum, sgpr=96):
    a.raw(f".amdhsa_kernel {name}")
    a.raw(f"  .amdhsa_next_free_vgpr {nfv}")
    a.raw(f"  .amdhsa_next_free_sgpr {sgpr}")
    a.raw(f"  .amdhsa_accum_offset {accum}")
    a.raw("  .amdhsa_group_segment_fixed_size 0")
    a.raw("  .amdhsa_kernarg_size 64")
    a.raw("  .amdhsa_user_sgpr_count 2")
    a.raw("  .amdhsa_user_sgpr_kernarg_segment_ptr 1")
    a.raw("  .amdhsa_system_sgpr_workgroup_id_x 1")
    a.raw(".end_amdhsa_kernel")

def main():
    a = Asm()
    a.raw("; @launch kernel=attn_kernel grid=(256,1,1) block=(256,1,1) lds=163840")
    a.raw("; @launch kernel=oproj_kernel grid=(256,1,1) block=(256,1,1) lds=131072")
    a.raw("; @launch kernel=ored_kernel grid=(576,1,1) block=(256,1,1) lds=0")
    a.raw('.amdgcn_target "amdgcn-amd-amdhsa--gfx950"')
    a.raw(".text")
    gen_attn(a)
    gen_oproj(a)
    gen_ored(a)
    a.raw('.section .rodata,"a"')
    a.raw(".p2align 6")
    kd(a, "attn_kernel", 480, 256)
    a.raw(".p2align 6")
    kd(a, "oproj_kernel", 512, 256)
    a.raw(".p2align 6")
    kd(a, "ored_kernel", 40, 40)
    open(sys.argv[1], "w").write(a.text())

main()
```

```python
import math, sys, struct, os

NS = 5
STAGES = 16
T_LOG2 = 10.0
C_SCALE = (128 ** -0.5) * math.log2(math.e)
NT_FLAG = " nt" if os.environ.get("KV_NT", "1") == "1" else ""
PART_OFF = 16 * 1024 * 1024

def f32bits(x):
    return struct.unpack("<I", struct.pack("<f", x))[0]

class Asm:
    def __init__(self):
        self.l = []
    def __call__(self, s):
        if s.endswith(":") and "\n" not in s:
            self.l.append(s)
        else:
            self.l.append("    " + s)
    def label(self, s):
        self.l.append(s + ":")
    def raw(self, s):
        self.l.append(s)
    def text(self):
        return "\n".join(self.l) + "\n"

def vr(b, n=None):
    return f"v{b}" if n is None else f"v[{b}:{b+n-1}]"
def ar(b, n=None):
    return f"a{b}" if n is None else f"a[{b}:{b+n-1}]"

def srd(a, d, lo, hi, addlo_sgpr, nrec):
    a(f"s_add_u32 s{d}, s{lo}, s{addlo_sgpr}")
    a(f"s_addc_u32 s{d+1}, s{hi}, 0")
    a(f"s_and_b32 s{d+1}, s{d+1}, 0xffff")
    a(f"s_mov_b32 s{d+2}, {nrec}")
    a(f"s_mov_b32 s{d+3}, 0x00020000")

TS = os.environ.get("TS", "0") == "1"
def stamp(a, idx, wavesel, wavereg="s16", pfx="TS"):
    if not TS: return
    a("s_memtime s[90:91]")
    a("s_load_dwordx2 s[92:93], s[0:1], 48")
    a("s_waitcnt lgkmcnt(0)")
    a(f"s_cmp_eq_u32 s2, {int(os.environ.get('TSWG', '0'))}")
    a(f"s_cbranch_scc0 {pfx}_SKIP_{idx}")
    a(f"s_cmp_eq_u32 {wavereg}, {wavesel}")
    a(f"s_cbranch_scc0 {pfx}_SKIP_{idx}")
    a("s_mov_b32 s94, 256")
    a("s_mov_b32 s95, 0x00020000")
    a("s_and_b32 s93, s93, 0xffff")
    a("v_mov_b32 v14, s90")
    a("v_mov_b32 v15, 0")
    a(f"buffer_store_dword v14, v15, s[92:95], 0 offen offset:{idx * 4}")
    a("s_waitcnt vmcnt(0)")
    a.label(f"{pfx}_SKIP_{idx}")

LT = []
def lstamp(a, k):
    if not TS: return
    a(f"s_memtime s[{60 + 2 * k}:{61 + 2 * k}]")
def ldump(a, n, wavesel, base, pfx, wavereg="s16"):
    if not TS: return
    a("s_load_dwordx2 s[92:93], s[0:1], 48")
    a("s_waitcnt lgkmcnt(0)")
    a(f"s_cmp_eq_u32 s2, {int(os.environ.get('TSWG', '0'))}")
    a(f"s_cbranch_scc0 {pfx}_LSKIP")
    a(f"s_cmp_eq_u32 {wavereg}, {wavesel}")
    a(f"s_cbranch_scc0 {pfx}_LSKIP")
    a("s_mov_b32 s94, 256")
    a("s_mov_b32 s95, 0x00020000")
    a("s_and_b32 s93, s93, 0xffff")
    a("v_mov_b32 v15, 0")
    for k in range(n):
        a(f"v_mov_b32 v14, s{60 + 2 * k}")
        a(f"buffer_store_dword v14, v15, s[92:95], 0 offen offset:{(base + k) * 4}")
        a("s_waitcnt vmcnt(0)")
    a.label(f"{pfx}_LSKIP")

def rstamp(a, kid, slot, wavesel, wavereg="s16", pfx="RS"):
    if os.environ.get("RTS") != "1": return
    a("s_memrealtime s[90:91]")
    a("s_load_dwordx2 s[92:93], s[0:1], 56")
    a("s_waitcnt lgkmcnt(0)")
    a(f"s_cmp_eq_u32 {wavereg}, {wavesel}")
    a(f"s_cbranch_scc0 {pfx}_{kid}_{slot}")
    a(f"s_add_u32 s92, s92, {64 * 1024 * 1024 + kid * 65536}")
    a("s_addc_u32 s93, s93, 0")
    a("s_mov_b32 s94, 65536")
    a("s_mov_b32 s95, 0x00020000")
    a("s_and_b32 s93, s93, 0xffff")
    a("s_lshl_b32 s91, s2, 4")
    a("v_mov_b32 v14, s90")
    a("v_mov_b32 v15, s91")
    a(f"buffer_store_dword v14, v15, s[92:95], 0 offen offset:{slot * 4}")
    a("s_waitcnt vmcnt(0)")
    a.label(f"{pfx}_{kid}_{slot}")

def cost(ins):
    if ins.endswith(":"): return 0.25
    if ins.startswith("v_exp") or ins.startswith("v_rcp"): return 2.0
    if ins.startswith("s_"): return 0.25
    if ins.startswith("ds_"): return 0.5
    return 1.0

def interleave(a, mf, va, lead=0):
    ab = os.environ.get("ABL", "")
    if "V" in ab: va = [x for x in va if not x.startswith("v_") or x.startswith("v_add_u32") or x.startswith("v_cmp")]
    if "E" in ab: va = [x for x in va if not x.startswith("v_exp")]
    if "D" in ab: va = [x for x in va if not x.startswith("ds_")]
    if "M" in ab: mf = ["s_nop 0"] * len(mf)
    n = len(mf)
    tot = sum(cost(x) for x in va)
    slots = n - lead
    vi = 0; acc = 0.0
    for k, m in enumerate(mf):
        a(m)
        if k >= lead:
            target = tot * (k - lead + 1) / slots
            while vi < len(va) and (acc + cost(va[vi]) * 0.5 <= target or k == n - 1):
                a(va[vi]); acc += cost(va[vi]); vi += 1
    while vi < len(va):
        a(va[vi]); vi += 1

def merge(main, extra, upto=1.0):
    out = []
    n = max(1, int(len(main) * upto))
    ei = 0
    for k, m in enumerate(main):
        out.append(m)
        if k < n:
            tgt = len(extra) * (k + 1) // n
            while ei < tgt:
                out.append(extra[ei]); ei += 1
    out += extra[ei:]
    return out

import re
def _regs(tok):
    m = re.match(r"([av])\[(\d+):(\d+)\]", tok)
    if m: return {(m.group(1), r) for r in range(int(m.group(2)), int(m.group(3)) + 1)}
    m = re.match(r"([av])(\d+)$", tok)
    if m: return {(m.group(1), int(m.group(2)))}
    return set()
LOOKOLD = 4
def auto_lgkm(body):
    n = len(body)
    two = body + body
    out_waits = {}
    last_write = {}
    ds_seq = 0
    done_upto = -1
    for idx, ins in enumerate(two):
        t = ins.strip()
        if t.startswith("ds_read") or t.startswith("ds_bpermute"):
            d = t.split()[1].rstrip(",")
            for r in _regs(d): last_write[r] = ds_seq
            ds_seq += 1
        elif t.startswith("s_waitcnt") and "lgkmcnt(0)" in t:
            done_upto = ds_seq - 1
        elif t.startswith("v_mfma"):
            ops = [x.strip() for x in t.split(None, 1)[1].split(",")]
            need = -1
            for o in ops[1:3]:
                for r in _regs(o):
                    if r in last_write: need = max(need, last_write[r])
            if need > done_upto:
                cnt = 0
                for ins2 in two[idx + 1: idx + 60]:
                    t2 = ins2.strip()
                    if t2.startswith("v_mfma"):
                        cnt += 1
                        if cnt > 8: break
                        ops2 = [x.strip() for x in t2.split(None, 1)[1].split(",")]
                        for o in ops2[1:3]:
                            for r in _regs(o):
                                if r in last_write and last_write[r] <= ds_seq - 1 - LOOKOLD: need = max(need, last_write[r])
                N = ds_seq - 1 - need
                N = min(N, 15)
                done_upto = ds_seq - 1 - N
                if idx >= n: out_waits[idx - n] = N
                else: out_waits.setdefault(idx, None)
    res = []
    for i, ins in enumerate(body):
        if out_waits.get(i) is not None:
            res.append(f"s_waitcnt lgkmcnt({out_waits[i]})")
        res.append(ins)
    return res

class Buf:
    def __init__(self): self.l = []
    def __call__(self, s): self.l.append(s)

def place(mf, fills):
    gaps = [[] for _ in mf]
    ab = os.environ.get("ABL", "")
    for (st, en, L) in fills:
        if "V" in ab: L = [x for x in L if not x.startswith("v_") or x.startswith("v_add_u32") or x.startswith("v_cmp")]
        if "E" in ab: L = [x for x in L if not x.startswith("v_exp")]
        if "P" in ab: L = [x for x in L if not (x.startswith("v_") and not x.startswith("v_exp")) or x.startswith("v_add_u32") or x.startswith("v_cmp")]
        if "D" in ab: L = [x for x in L if not x.startswith("ds_")]
        if "K" in ab: L = [x for x in L if not x.startswith("ds_read_b128")]
        if "T" in ab: L = [x for x in L if not x.startswith("ds_read_b64_tr")]
        if "N" in ab: L = [x.replace("ds_read_b64_tr_b16", "ds_read_b64") for x in L]
        if not L: continue
        tot = sum(cost(x) for x in L); acc = 0.0
        for x in L:
            pos = st + int((acc + cost(x) * 0.5) / tot * (en - st)) if tot > 0 else st
            pos = min(pos, en - 1)
            gaps[pos].append(x); acc += cost(x)
    out = []
    for m, g in zip(mf, gaps):
        out.append(m); out += g
    return out

def tr_addr_setup(a, dst, base_imm):
    a("v_lshrrev_b32 v5, 2, v2")
    a("v_and_b32 v6, 3, v2")
    a("v_lshl_add_u32 v7, v1, 3, v5")
    a("v_lshlrev_b32 v7, 8, v7")
    a("v_lshl_add_u32 v7, v6, 6, v7")
    if base_imm:
        a(f"v_add_u32 v7, {base_imm}, v7")
    for ih in range(4):
        a(f"v_xor_b32 v9, {ih}, v5")
        a(f"v_lshl_add_u32 v{dst + ih}, v9, 4, v7")

def gen_attn(a):
    a.raw(".globl attn_kernel")
    a.raw(".p2align 8")
    a.raw(".type attn_kernel,@function")
    a.label("attn_kernel")
    a("s_cmp_ge_u32 s2, 256")
    a("s_cbranch_scc1 A_END")
    a("s_load_dwordx8 s[4:11], s[0:1], 0")
    a("s_load_dwordx2 s[12:13], s[0:1], 56")
    if os.environ.get("MAPB", "1") == "1":
        a("s_lshr_b32 s14, s2, 5")
        a("s_and_b32 s15, s2, 31")
    else:
        a("s_and_b32 s14, s2, 7")
        a("s_lshr_b32 s15, s2, 3")
    a("v_lshrrev_b32 v1, 6, v0")
    a("v_and_b32 v0, 63, v0")
    a("s_nop 0")
    a("v_readfirstlane_b32 s16, v1")
    a("s_waitcnt lgkmcnt(0)")
    a("s_mul_i32 s17, s14, 147456")
    srd(a, 20, 4, 5, 17, 147456)
    a("s_lshl_b32 s17, s14, 5")
    a("s_add_u32 s17, s17, s15")
    a("s_lshl_b32 s17, s17, 18")
    srd(a, 24, 6, 7, 17, 262144)
    srd(a, 28, 8, 9, 17, 262144)
    a("s_lshl_b32 s17, s15, 8")
    a("s_sub_u32 s18, 4194304, s17")
    srd(a, 32, 10, 11, 17, "s18")
    a("s_mul_i32 s18, s14, 1179648")
    a("s_lshl_b32 s17, s15, 12")
    a("s_add_u32 s18, s18, s17")
    a("s_sub_u32 s19, 1179648, s17")
    srd(a, 36, 12, 13, 18, "s19")
    if os.environ.get("ROT", "1") == "1":
        a("s_lshl_b32 s46, s14, 1")
        a("s_lshr_b32 s47, s15, 3")
        a("s_mul_i32 s47, s47, 5")
        a("s_add_u32 s46, s46, s47")
    else:
        a("s_mov_b32 s46, 0")
    stamp(a, 0, 0)
    stamp(a, 8, 3)
    rstamp(a, 0, 0, 0)
    a("v_lshrrev_b32 v1, 4, v0")
    a("v_and_b32 v2, 15, v0")
    a("s_cmp_eq_u32 s16, 3")
    a("s_cbranch_scc1 A_LOADER")

    WQL = 98304
    a("s_mul_i32 s17, s16, 49152")
    a("v_lshrrev_b32 v4, 2, v0")
    a("v_lshlrev_b32 v4, 10, v4")
    a("v_and_b32 v5, 3, v0")
    a("v_lshl_add_u32 v4, v5, 4, v4")
    a("v_add_u32 v10, s17, v4")
    a("v_add_u32 v11, 16384, v10")
    a("v_add_u32 v12, 32768, v10")
    XR = 64
    XF = 16
    AF = 96
    QTA = 0
    def qt(t, i): return QTA + (t * 8 + i) * 4
    XLA = int(os.environ.get("XLA", "4"))
    def xl(c):
        L = [f"s_add_u32 s47, s46, {c}", "s_and_b32 s47, s47, 15", "s_lshl_b32 s47, s47, 6"]
        for t in range(3):
            L.append(f"buffer_load_dwordx4 {vr(XR + c * 12 + t * 4, 4)}, v{10 + t}, s[20:23], s47 offen")
        return L
    for c in range(XLA):
        for x in xl(c): a(x)
    a("v_lshlrev_b32 v13, 4, v2")
    a("v_lshl_add_u32 v13, v1, 2, v13")
    TA = 56
    tr_addr_setup(a, TA, WQL)
    for i in range(96):
        a(f"v_accvgpr_write_b32 {ar(QTA + i)}, 0")
    def qreads(c):
        L = []
        if c < 16:
            for t in range(3):
                for e in range(4):
                    L.append(f"ds_bpermute_b32 v{XF + (c & 1) * 12 + t * 4 + e}, v13, v{XR + c * 12 + t * 4 + e}")
            for i in range(8):
                for hh in range(2):
                    L.append(f"ds_read_b64_tr_b16 {ar(AF + (c & 1) * 32 + i * 4 + hh * 2, 2)}, v{TA + (i >> 1)} offset:{(c & 7) * 8192 + hh * 1024 + (i & 1) * 8}")
        return L
    a(f"s_waitcnt vmcnt({3 * (XLA - 1)})")
    a("s_barrier")
    for x in qreads(0): a(x)
    for c in range(16):
        a(f"s_waitcnt lgkmcnt(0) vmcnt({max(0, 3 * (min(16, c + XLA) - (c + 2)))})")
        if TS and os.environ.get("QTS") == "1" and c < 14:
            lstamp(a, c)
        a("s_barrier")
        mf = [f"v_mfma_f32_16x16x32_bf16 {ar(qt(t, i), 4)}, {ar(AF + (c & 1) * 32 + i * 4, 4)}, {vr(XF + (c & 1) * 12 + t * 4, 4)}, {ar(qt(t, i), 4)}"
              for i in range(8) for t in range(3)]
        for x in place(mf, [(0, 20, qreads(c + 1)), (16, 24, xl(c + XLA) if c + XLA < 16 else [])]):
            a(x)
    a("s_nop 7")
    QF = 16
    def qf(t, s): return QF + (t * 4 + s) * 4
    for t in range(3):
        for s in range(4):
            for p in range(4):
                src = qt(t, 2 * s + (p >> 1)) + (p & 1) * 2
                a(f"v_accvgpr_read_b32 v8, {ar(src)}")
                a(f"v_accvgpr_read_b32 v9, {ar(src + 1)}")
                a(f"v_mul_f32 v8, {f32bits(C_SCALE):#x}, v8")
                a(f"v_mul_f32 v9, {f32bits(C_SCALE):#x}, v9")
                a(f"v_cvt_pk_bf16_f32 {vr(qf(t, s) + p)}, v8, v9")
    a("s_waitcnt vmcnt(0)")
    stamp(a, 1, 0)
    SB = 64; PB = 112
    MN = 136
    THR = 148; LS = 151; CL = 154
    KA = 160; VA = 164; KA0 = 172; VA0 = 176
    EB = 184
    TMP = 232
    OA = 0; KF = 96; VF = 160
    def sreg(t, kt): return SB + (t * 4 + kt) * 4
    def preg(t, u): return PB + (t * 2 + u) * 4
    def oreg(t, i): return OA + (t * 8 + i) * 4
    def kf(kt, s): return KF + (kt * 4 + s) * 4
    def vf(i, u): return VF + (i * 2 + u) * 4
    for t in range(3):
        for r in range(4):
            a(f"v_mov_b32 {vr(MN + t * 4 + r)}, 0")
        a(f"v_mov_b32 {vr(THR + t)}, -1.0")
        a(f"v_mov_b32 {vr(CL + t)}, 0xff800000")
        a(f"v_mov_b32 {vr(LS + t)}, 0")
    for i in range(96):
        a(f"v_accvgpr_write_b32 {ar(OA + i)}, 0")
    for i in range(64):
        a(f"v_accvgpr_write_b32 {ar(VF + i)}, 0")
    a("v_and_b32 v5, 3, v2")
    a("v_lshlrev_b32 v5, 2, v5")
    a("v_lshrrev_b32 v6, 2, v2")
    a("v_or_b32 v5, v5, v6")
    a("v_lshlrev_b32 v6, 2, v1")
    a("v_xor_b32 v5, v5, v6")
    for s in range(4):
        a(f"v_xor_b32 v6, {s}, v5")
        a(f"v_lshlrev_b32 v6, 4, v6")
        a(f"v_lshl_add_u32 {vr(KA0 + s)}, v2, 8, v6")
    a("v_lshrrev_b32 v5, 2, v2")
    a("v_and_b32 v6, 3, v2")
    a("v_lshl_add_u32 v7, v1, 2, v5")
    a("v_and_b32 v8, 7, v7")
    a("v_lshlrev_b32 v7, 8, v7")
    a("v_lshrrev_b32 v9, 1, v6")
    a("v_lshl_add_u32 v7, v9, 4, v7")
    a("v_and_b32 v9, 1, v6")
    a("v_lshl_add_u32 v7, v9, 3, v7")
    a("v_add_u32 v7, 16384, v7")
    for i in range(8):
        a(f"v_xor_b32 v9, {i}, v8")
        a(f"v_lshl_add_u32 {vr(VA0 + i)}, v9, 5, v7")
    a(f"s_mov_b32 s50, {f32bits(2.0 ** T_LOG2):#x}")

    def qk(t):
        L = []
        order = [(kt, s) for kt in range(4) for s in range(4)]
        if os.environ.get("QKO") == "1":
            order = [(kp * 2 + k2, s) for kp in range(2) for s in range(4) for k2 in range(2)]
        for (kt, s) in order:
            if True:
                c = vr(MN + t * 4, 4) if s == 0 else vr(sreg(t, kt), 4)
                L.append(f"v_mfma_f32_16x16x32_bf16 {vr(sreg(t, kt), 4)}, {ar(kf(kt, s), 4)}, {vr(qf(t, s), 4)}, {c}")
        return L
    def pv(t):
        L = []
        for u in range(2):
            for i in range(8):
                L.append(f"v_mfma_f32_16x16x32_bf16 {ar(oreg(t, i), 4)}, {ar(vf(i, u), 4)}, {vr(preg(t, u), 4)}, {ar(oreg(t, i), 4)}")
        return L
    def sumtree(t):
        E = EB + t * 16; T = TMP + t * 8
        return
    def sm1(t):
        S = sreg(t, 0); E = EB + t * 16; T = TMP + t * 8
        L = []
        for e in range(16):
            L.append(f"v_exp_f32 v{E+e}, v{S+e}")
            if e in (3, 5, 7, 9):
                k = (e - 3)
                L.append(f"v_add_f32 v{T + k // 2}, v{E+k}, v{E+k+1}")
        return L
    def sm2(t, tail=False):
        S = sreg(t, 0); E = EB + t * 16; T = TMP + t * 8
        L = []
        for k in (8, 10, 12, 14):
            L.append(f"v_add_f32 v{T + k // 2}, v{E+k}, v{E+k+1}")
        L += [f"v_add_f32 v{T}, v{T}, v{T+1}", f"v_add_f32 v{T+2}, v{T+2}, v{T+3}",
              f"v_add_f32 v{T+4}, v{T+4}, v{T+5}", f"v_add_f32 v{T+6}, v{T+6}, v{T+7}",
              f"v_add_f32 v{T}, v{T}, v{T+2}", f"v_add_f32 v{T+4}, v{T+4}, v{T+6}",
              f"v_add_f32 v{T}, v{T}, v{T+4}",
              f"v_cmp_gt_f32 vcc, v{T}, v{THR+t}",
              f"s_cbranch_vccnz A_SLOW_{t}{'T' if tail else ''}\nA_BACK_{t}{'T' if tail else ''}:",
              f"v_add_f32 v{LS+t}, v{LS+t}, v{T}"]
        for q in range(8):
            L.append(f"v_cvt_pk_bf16_f32 v{preg(t, 0) + q}, v{E+2*q}, v{E+2*q+1}")
        return L
    def kreads():
        return [f"ds_read_b128 {ar(kf(kt, s), 4)}, {vr(KA + s)} offset:{kt * 4096}" for kt in range(4) for s in range(4)]
    def vreads():
        return [f"ds_read_b64_tr_b16 {ar(vf(i, u) + hh * 2, 2)}, {vr(VA + i)} offset:{(2 * u + hh) * 4096}"
                for u in range(2) for i in range(8) for hh in range(2)]
    for e in range(16):
        a(f"v_mov_b32 v{EB + 32 + e}, 0")
    for e in range(8):
        a(f"v_mov_b32 v{TMP + 16 + e}, 0")
    a(f"v_mov_b32 v{THR + 2}, 1.0")
    a("s_mov_b32 s17, 0")
    a("s_mov_b32 s18, 0")
    for s in range(4):
        a(f"v_mov_b32 {vr(KA + s)}, {vr(KA0 + s)}")
    a("s_barrier")
    stamp(a, 2, 0)
    KR = kreads(); VR = vreads()
    for x in KR[:12]:
        a(x)
    a("s_waitcnt lgkmcnt(0)")
    vaddr = [f"v_add_u32 {vr(VA + i)}, s17, {vr(VA0 + i)}" for i in range(8)]
    kaddr = [f"v_add_u32 {vr(KA + s)}, s17, {vr(KA0 + s)}" for s in range(4)]
    body = []
    body += place(qk(0), [(0, 6, KR[12:16]), (0, 16, sm2(2) + ["s_cmp_eq_u32 s18, 0", "s_cbranch_scc1 A_FIX\nA_FIXBACK:"])])
    body += ["s_nop 1"]
    body += place(pv(2), [(0, 4, vaddr), (2, 16, sm1(0)), (8, 16, VR[:16])])
    body += place(qk(1), [(0, 16, sm2(0)), (0, 12, VR[16:])])
    body += ["s_add_u32 s17, s17, 32768", "s_cmp_eq_u32 s17, 163840", "s_cselect_b32 s17, 0, s17"]
    body += place(pv(0), [(0, 2, kaddr), (1, 16, sm1(1))])
    if os.environ.get("NOBAR") != "1":
        body += ["s_barrier"]
    body += place(qk(2), [(0, 16, sm2(1)), (4, 8, KR[0:4]), (8, 12, KR[4:8])])
    body += ["s_nop 1"]
    body += place(pv(1), [(2, 16, sm1(2)), (0, 8, KR[8:12])])
    body += ["s_add_u32 s18, s18, 1", "s_cmp_lt_u32 s18, 16"]
    body = auto_lgkm(body)
    if os.environ.get("KVARCH") == "1":
        def remap(m):
            lo, hi = int(m.group(1)), int(m.group(2))
            if lo >= 96:
                lo2 = 16 + (lo - 96) % 48
                return f"v[{lo2}:{lo2 + hi - lo}]"
            return m.group(0)
        body = [re.sub(r"a\[(\d+):(\d+)\]", remap, x) for x in body]
    a.label("A_LOOP")
    for x in body:
        a(x)
    a("s_cbranch_scc1 A_LOOP")
    stamp(a, 3, 0)
    a("s_nop 1")
    for x in sm2(2, True):
        a(x)
    a("s_nop 1")
    for x in pv(2):
        a(x)
    a("s_waitcnt lgkmcnt(0)")
    a("s_nop 15")
    a("s_mul_i32 s17, s16, 393216")
    a("v_lshrrev_b32 v5, 1, v1")
    a("v_lshlrev_b32 v5, 8, v5")
    a("v_lshl_add_u32 v5, v2, 4, v5")
    a("v_and_b32 v6, 1, v1")
    a("v_lshl_add_u32 v5, v6, 3, v5")
    a("v_add_u32 v5, s17, v5")
    a("s_mov_b32 s42, 0")
    a("s_mov_b32 s43, 131072")
    a("s_mov_b32 s44, 262144")
    for t in range(3):
        a(f"v_mov_b32 v{TMP}, v{LS+t}")
        a(f"v_mov_b32 v{TMP+1}, v{LS+t}")
        a("s_nop 1")
        a(f"v_permlane32_swap_b32 v{TMP}, v{TMP+1}")
        a(f"v_add_f32 v{TMP}, v{TMP}, v{TMP+1}")
        a(f"v_mov_b32 v{TMP+1}, v{TMP}")
        a("s_nop 1")
        a(f"v_permlane16_swap_b32 v{TMP}, v{TMP+1}")
        a(f"v_add_f32 v{TMP}, v{TMP}, v{TMP+1}")
        a(f"v_rcp_f32 v{TMP}, v{TMP}")
        a("s_nop 0")
        for i in range(8):
            for r in range(4):
                a(f"v_accvgpr_read_b32 v{TMP+2+r}, {ar(oreg(t, i) + r)}")
            for r in range(4):
                a(f"v_mul_f32 v{TMP+2+r}, v{TMP+2+r}, v{TMP}")
            d = 64 + (t * 8 + i) * 2
            a(f"v_cvt_pk_bf16_f32 v{d}, v{TMP+2}, v{TMP+3}")
            a(f"v_cvt_pk_bf16_f32 v{d+1}, v{TMP+4}, v{TMP+5}")
            a(f"buffer_store_dwordx2 {vr(d, 2)}, v5, s[36:39], s{42+t} offen offset:{(i & 1) * 512 + (i >> 1) * 1024}{os.environ.get('OST', '')}")
    if TS:
        a("s_waitcnt vmcnt(0)")
    stamp(a, 4, 0)
    if os.environ.get("RTS") == "1": a("s_waitcnt vmcnt(0)")
    rstamp(a, 0, 1, 0)
    if os.environ.get("QTS") == "1":
        ldump(a, 14, 0, 16, "TQ")
    a("s_branch A_END")
    a.label("A_FIX")
    a(f"v_mov_b32 v{THR + 2}, -1.0")
    a("s_branch A_FIXBACK")
    for (t, sfx) in ((0, ""), (1, ""), (2, ""), (2, "T")):
        S = sreg(t, 0); E = EB + t * 16; T = TMP + t * 8
        a.label(f"A_SLOW_{t}{sfx}")
        a(f"v_max3_f32 v{T}, v{S}, v{S+1}, v{S+2}")
        a(f"v_max3_f32 v{T+1}, v{S+3}, v{S+4}, v{S+5}")
        a(f"v_max3_f32 v{T+2}, v{S+6}, v{S+7}, v{S+8}")
        a(f"v_max3_f32 v{T+3}, v{S+9}, v{S+10}, v{S+11}")
        a(f"v_max3_f32 v{T}, v{T}, v{T+1}, v{T+2}")
        a(f"v_max3_f32 v{T+4}, v{S+12}, v{S+13}, v{S+14}")
        a(f"v_max3_f32 v{T}, v{T}, v{T+3}, v{S+15}")
        a(f"v_max_f32 v{T}, v{T}, v{T+4}")
        a(f"v_mov_b32 v{T+1}, v{T}")
        a("s_nop 1")
        a(f"v_permlane32_swap_b32 v{T}, v{T+1}")
        a(f"v_max_f32 v{T}, v{T}, v{T+1}")
        a(f"v_mov_b32 v{T+1}, v{T}")
        a("s_nop 1")
        a(f"v_permlane16_swap_b32 v{T}, v{T+1}")
        a(f"v_max3_f32 v{T}, v{T}, v{T+1}, v{CL+t}")
        a(f"v_mov_b32 v{CL+t}, 0")
        a(f"v_mov_b32 v{THR+t}, s50")
        a(f"v_sub_f32 v{T+1}, 0, v{T}")
        a(f"v_exp_f32 v{T+1}, v{T+1}")
        for r in range(4):
            a(f"v_sub_f32 v{MN + t * 4 + r}, v{MN + t * 4 + r}, v{T}")
        a(f"v_min_f32 v{T+1}, v{T+1}, s50")
        a(f"v_mul_f32 v{LS+t}, v{LS+t}, v{T+1}")
        a("s_nop 7")
        for i in range(32):
            a(f"v_accvgpr_read_b32 v{T+2+(i&3)}, {ar(oreg(t, 0) + i)}")
            a(f"v_mul_f32 v{T+2+(i&3)}, v{T+2+(i&3)}, v{T+1}")
            a(f"v_accvgpr_write_b32 {ar(oreg(t, 0) + i)}, v{T+2+(i&3)}")
        for e in range(16):
            a(f"v_sub_f32 v{E+e}, v{S+e}, v{T}")
        for e in range(16):
            a(f"v_exp_f32 v{E+e}, v{E+e}")
        a("s_nop 0")
        a(f"v_add_f32 v{T}, v{E}, v{E+1}")
        for e in range(2, 16):
            a(f"v_add_f32 v{T}, v{T}, v{E+e}")
        a(f"s_branch A_BACK_{t}{sfx}")

    a.label("A_LOADER")
    for q in range(4):
        a(f"v_lshlrev_b32 v3, 2, v1")
        a(f"v_or_b32 v3, {q}, v3")
        a(f"v_xor_b32 v3, v3, v2")
        a(f"v_lshlrev_b32 v3, 4, v3")
        a(f"v_lshl_add_u32 v{4+q}, v1, 8, v3")
    for p in range(2):
        a(f"v_or_b32 v3, {p << 2}, v1")
        a(f"v_lshlrev_b32 v3, 1, v3")
        a(f"v_xor_b32 v3, v3, v2")
        a(f"v_lshlrev_b32 v3, 4, v3")
        a(f"v_lshl_add_u32 v{8+p}, v1, 8, v3")
    def issue_stage(bar_every2):
        for kv in range(2):
            for G in range(4):
                a("s_waitcnt vmcnt(59)")
                a(f"s_add_u32 m0, s40, {kv * 16384 + G * 4096}")
                a(f"s_add_u32 s17, s41, {G * 4096}")
                for q in range(4):
                    vo = 4 + q if kv == 0 else 8 + (q & 1)
                    sr = "s[24:27]" if kv == 0 else "s[28:31]"
                    if os.environ.get("NOKV", "0") != "1":
                        a(f"buffer_load_dwordx4 v{vo}, {sr}, s17 offen offset:{q * 1024}{NT_FLAG} lds")
                if bar_every2 and (G & 1):
                    a("s_barrier")
        a("s_add_u32 s41, s41, 16384")
        a("s_add_u32 s40, s40, 32768")
        a("s_cmp_eq_u32 s40, 163840")
        a("s_cselect_b32 s40, 0, s40")
    a("v_xor_b32 v3, v2, v1")
    a("v_lshlrev_b32 v3, 4, v3")
    a("v_lshl_add_u32 v10, v1, 13, v3")
    ops = []
    def throttle(k):
        a(f"s_waitcnt vmcnt({63 - k})")
    def wq_chunk(c):
        for half in range(2):
            throttle(4)
            a(f"s_mov_b32 m0, {98304 + (c & 7) * 8192 + half * 4096}")
            a(f"s_add_u32 s47, s46, {c}")
            a("s_and_b32 s47, s47, 15")
            a("s_lshl_b32 s47, s47, 18")
            for q in range(4):
                n = half * 4 + q
                a(f"s_add_u32 s17, s47, {(4 * n) * 8192 - q * 1024}")
                if os.environ.get("NOWQ") != "1":
                    a(f"buffer_load_dwordx4 v10, s[32:35], s17 offen offset:{q * 1024} lds")
                    ops.append(("wq", c))
    def kv_group(st, kv, G):
        throttle(4)
        a(f"s_mov_b32 m0, {(st % NS) * 32768 + kv * 16384 + G * 4096}")
        a(f"s_mov_b32 s17, {st * 16384 + G * 4096}")
        for q in range(4):
            vo = 4 + q if kv == 0 else 8 + (q & 1)
            sr = "s[24:27]" if kv == 0 else "s[28:31]"
            if os.environ.get("NOKV", "0") != "1":
                a(f"buffer_load_dwordx4 v{vo}, {sr}, s17 offen offset:{q * 1024}{NT_FLAG} lds")
                ops.append(("kv", st))
    def wait_for(tag):
        last = max(i for i, o in enumerate(ops) if o == tag) if tag in ops else None
        if last is None: return
        n = len(ops) - 1 - last
        if n < 63: a(f"s_waitcnt vmcnt({n})")
    kvq = [(st, kv, G) for st in range(3) for kv in range(2) for G in range(4)]
    KVS = int(os.environ.get("KVS", "9")); KVR = int(os.environ.get("KVR", "3"))
    for c in range(3): wq_chunk(c)
    if KVS == 0:
        kv_group(*kvq.pop(0)); kv_group(*kvq.pop(0))
    for c in range(3, 8): wq_chunk(c)
    for c in range(17):
        if c < 16: wait_for(("wq", c))
        a("s_barrier")
        if c >= 1 and c + 7 < 16: wq_chunk(c + 7)
        if c >= KVS:
            for e in range(KVR):
                if kvq: kv_group(*kvq.pop(0))
    while kvq: kv_group(*kvq.pop(0))
    stamp(a, 9, 3)
    wait_for(("kv", 0))
    a("s_barrier")
    if os.environ.get("NOBAR") == "1":
        a("s_branch A_END")
    a("s_mov_b32 s40, 98304")
    a("s_mov_b32 s41, 49152")
    a("s_mov_b32 s42, 3")
    issue_stage(False)
    a("s_mov_b32 s42, 4")
    a("s_branch A_LENTRY")
    a.label("A_LLOOP")
    a("s_barrier")
    a.label("A_LENTRY")
    issue_stage(False)
    a("s_add_u32 s42, s42, 1")
    a("s_cmp_lt_u32 s42, 16")
    a("s_cbranch_scc1 A_LLOOP")
    stamp(a, 10, 3)
    a("s_barrier")
    a("s_barrier")
    a("s_waitcnt vmcnt(32)")
    a("s_barrier")
    a("s_waitcnt vmcnt(0)")
    stamp(a, 11, 3)
    a("s_barrier")
    a("s_barrier")
    a.label("A_END")
    a("s_endpgm")

def gen_oproj(a):
    a.raw(".globl oproj_kernel")
    a.raw(".p2align 8")
    a.raw(".type oproj_kernel,@function")
    a.label("oproj_kernel")
    a("s_cmp_ge_u32 s2, 256")
    a("s_cbranch_scc1 O_END")
    a("s_load_dwordx2 s[4:5], s[0:1], 32")
    a("s_load_dwordx2 s[8:9], s[0:1], 56")
    a("s_and_b32 s18, s2, 7")
    a("s_lshr_b32 s15, s2, 3")
    a("s_and_b32 s14, s15, 7")
    a("s_lshr_b32 s17, s15, 3")
    a("v_lshrrev_b32 v1, 6, v0")
    a("v_and_b32 v0, 63, v0")
    a("s_nop 0")
    a("v_readfirstlane_b32 s16, v1")
    a("s_waitcnt lgkmcnt(0)")
    a("s_lshl_b32 s19, s18, 19")
    a("s_lshl_b32 s20, s17, 8")
    a("s_add_u32 s19, s19, s20")
    a("s_sub_u32 s20, 524288, s20")
    srd(a, 24, 4, 5, 19, "s20")
    a("s_mul_i32 s19, s14, 1179648")
    a("s_lshl_b32 s20, s18, 14")
    a("s_add_u32 s19, s19, s20")
    a("s_sub_u32 s20, 1179648, s20")
    srd(a, 28, 8, 9, 19, "s20")
    a("s_lshl_b32 s19, s18, 3")
    a("s_add_u32 s19, s19, s14")
    a("s_mul_i32 s19, s19, 36")
    a("s_add_u32 s19, s19, s17")
    a("s_lshl_b32 s19, s19, 13")
    a(f"s_add_u32 s19, s19, {PART_OFF}")
    a("s_lshl_b32 s20, s17, 13")
    a("s_sub_u32 s20, 294912, s20")
    srd(a, 32, 8, 9, 19, "s20")
    stamp(a, 0, 0, pfx="TO")
    rstamp(a, 1, 0, 0)
    a("v_lshrrev_b32 v1, 4, v0")
    a("v_and_b32 v2, 15, v0")
    a("s_lshl_b32 s40, s14, 1")
    a("s_mul_i32 s41, s17, 5")
    a("s_add_u32 s40, s40, s41")
    a("v_xor_b32 v3, v2, v1")
    a("v_lshlrev_b32 v3, 4, v3")
    a("v_lshl_add_u32 v3, v1, 10, v3")
    a("s_lshl_b32 s19, s16, 13")
    a("v_add_u32 v3, s19, v3")
    a("v_add_u32 v12, 3072, v3")
    a("s_lshl_b32 s21, s16, 11")
    BF = 64
    a("s_mul_i32 s19, s16, 393216")
    a("v_lshlrev_b32 v4, 4, v0")
    a("v_add_u32 v4, s19, v4")
    a("v_add_u32 v10, 0x20000, v4")
    a("v_add_u32 v11, 0x40000, v4")
    vb = [4, 10, 11]
    def o_issue(c, withb):
        a(f"s_add_u32 s41, s40, {c}")
        a("s_and_b32 s41, s41, 15")
        a("s_lshl_b32 s42, s41, 15")
        a("s_lshl_b32 s43, s41, 10")
        a(f"s_add_u32 m0, s21, {c * 8192}")
        a("s_nop 0")
        a(f"buffer_load_dwordx4 v3, s[24:27], s42 offen lds")
        a(f"buffer_load_dwordx4 v12, s[24:27], s42 offen offset:1024 lds")
        if withb:
            for t in range(3):
                a(f"buffer_load_dwordx4 {ar(BF + (c * 3 + t) * 4, 4)}, v{vb[t]}, s[28:31], s43 offen")
    a("s_cmp_eq_u32 s16, 3")
    a("s_cbranch_scc1 O_LOADER")
    PRE = int(os.environ.get('PRE', '4'))
    for c in range(PRE):
        o_issue(c, True)
    TA = 56
    tr_addr_setup(a, TA, 0)
    ACC = 64; AF = 0
    def acc(t, i): return ACC + (t * 8 + i) * 4
    for e in range(96):
        a(f"v_mov_b32 v{ACC + e}, 0")
    for ih in range(4):
        a(f"v_add_u32 v{60 + ih}, 0x10000, v{TA + ih}")
    issued = PRE
    for c in range(16):
        if c % 2 == 0:
            a(f"s_waitcnt vmcnt({5 * (issued - (c + 2))})")
            a("s_barrier")
            lstamp(a, c // 2)
            for e in range(2):
                if issued < 16:
                    o_issue(issued, True); issued += 1
        ab = AF + (c & 1) * 32
        base = TA if c < 8 else 60
        for i in range(8):
            for hh in range(2):
                a(f"ds_read_b64_tr_b16 {ar(ab + i * 4 + hh * 2, 2)}, v{base + (i >> 1)} offset:{(c & 7) * 8192 + hh * 1024 + (i & 1) * 8}")
        for i in range(8):
            a(f"s_waitcnt lgkmcnt({min(15, 14 - 2 * i)})")
            for t in range(3):
                a(f"v_mfma_f32_16x16x32_bf16 {vr(acc(t, i), 4)}, {ar(ab + i * 4, 4)}, {ar(BF + (c * 3 + t) * 4, 4)}, {vr(acc(t, i), 4)}")
    a("s_nop 15")
    stamp(a, 6, 0, pfx="TO")
    a("s_mul_i32 s19, s16, 98304")
    a("v_lshlrev_b32 v3, 4, v0")
    a("v_add_u32 v3, s19, v3")
    for t in range(3):
        a(f"s_mov_b32 s19, {t * 32768}")
        a(f"s_mov_b32 s20, {t * 32768 + 4096}")
        for i in range(8):
            a(f"buffer_store_dwordx4 {vr(acc(t, i), 4)}, v3, s[32:35], s{19 + (i >> 2)} offen offset:{(i & 3) * 1024}{os.environ.get('PST', ' sc0 sc1')}")
    if TS:
        a("s_waitcnt vmcnt(0)")
    stamp(a, 1, 0, pfx="TO")
    if os.environ.get("RTS") == "1": a("s_waitcnt vmcnt(0)")
    rstamp(a, 1, 1, 0)
    ldump(a, 8, 0, 16, "TO")
    a("s_branch O_END")
    a.label("O_LOADER")
    for c in range(16):
        o_issue(c, False)
    for c in range(0, 16, 2):
        a(f"s_waitcnt vmcnt({32 - 2 * (c + 2)})")
        a("s_barrier")
    a.label("O_END")
    a("s_endpgm")

def gen_ored(a):
    a.raw(".globl ored_kernel")
    a.raw(".p2align 8")
    a.raw(".type ored_kernel,@function")
    a.label("ored_kernel")
    a("s_cmp_ge_u32 s2, 576")
    a("s_cbranch_scc1 R_END")
    a("s_load_dwordx2 s[4:5], s[0:1], 40")
    a("s_load_dwordx2 s[8:9], s[0:1], 56")
    a("v_lshrrev_b32 v1, 6, v0")
    a("v_and_b32 v0, 63, v0")
    a("s_nop 0")
    a("v_readfirstlane_b32 s16, v1")
    a("s_waitcnt lgkmcnt(0)")
    rstamp(a, 2, 0, 0)
    a("s_lshl_b32 s17, s2, 2")
    a("s_add_u32 s17, s17, s16")
    a("s_and_b32 s18, s17, 7")
    a("s_lshr_b32 s19, s17, 3")
    a("s_lshl_b32 s20, s17, 10")
    a(f"s_add_u32 s21, s20, {PART_OFF}")
    a(f"s_sub_u32 s22, {8 * 288 * 8192}, s20")
    srd(a, 24, 8, 9, 21, "s22")
    a("v_lshlrev_b32 v3, 4, v0")
    for k in range(8):
        a(f"s_mov_b32 s{32 + k}, {k * 288 * 8192}")
        a(f"buffer_load_dwordx4 {vr(8 + k * 4, 4)}, v3, s[24:27], s{32 + k} offen")
    a("s_lshr_b32 s20, s19, 2")
    a("s_lshl_b32 s20, s20, 14")
    a("s_and_b32 s21, s19, 3")
    a("s_lshl_b32 s21, s21, 8")
    a("s_add_u32 s20, s20, s21")
    a("s_lshl_b32 s21, s18, 3")
    a("s_add_u32 s20, s20, s21")
    a(f"s_sub_u32 s22, 1179648, s20")
    srd(a, 28, 4, 5, 20, "s22")
    a("v_lshrrev_b32 v1, 4, v0")
    a("v_and_b32 v2, 15, v0")
    a("v_lshlrev_b32 v4, 10, v2")
    a("v_lshl_add_u32 v4, v1, 6, v4")
    for k in range(1, 8):
        a(f"s_waitcnt vmcnt({7 - k})")
        for r in range(4):
            a(f"v_add_f32 v{8 + r}, v{8 + r}, v{8 + k * 4 + r}")
    a("v_cvt_pk_bf16_f32 v6, v8, v9")
    a("v_cvt_pk_bf16_f32 v7, v10, v11")
    a("buffer_store_dwordx2 v[6:7], v4, s[28:31], 0 offen")
    if os.environ.get("RTS") == "1": a("s_waitcnt vmcnt(0)")
    rstamp(a, 2, 1, 0)
    a.label("R_END")
    a("s_endpgm")

def kd(a, name, nfv, accum, sgpr=96):
    a.raw(f".amdhsa_kernel {name}")
    a.raw(f"  .amdhsa_next_free_vgpr {nfv}")
    a.raw(f"  .amdhsa_next_free_sgpr {sgpr}")
    a.raw(f"  .amdhsa_accum_offset {accum}")
    a.raw("  .amdhsa_group_segment_fixed_size 0")
    a.raw("  .amdhsa_kernarg_size 64")
    a.raw("  .amdhsa_user_sgpr_count 2")
    a.raw("  .amdhsa_user_sgpr_kernarg_segment_ptr 1")
    a.raw("  .amdhsa_system_sgpr_workgroup_id_x 1")
    a.raw(".end_amdhsa_kernel")

def main():
    a = Asm()
    a.raw("; @launch kernel=attn_kernel grid=(256,1,1) block=(256,1,1) lds=163840")
    a.raw("; @launch kernel=oproj_kernel grid=(256,1,1) block=(256,1,1) lds=131072")
    a.raw("; @launch kernel=ored_kernel grid=(576,1,1) block=(256,1,1) lds=0")
    a.raw('.amdgcn_target "amdgcn-amd-amdhsa--gfx950"')
    a.raw(".text")
    gen_attn(a)
    gen_oproj(a)
    gen_ored(a)
    a.raw('.section .rodata,"a"')
    a.raw(".p2align 6")
    kd(a, "attn_kernel", 480, 256)
    a.raw(".p2align 6")
    kd(a, "oproj_kernel", 512, 256)
    a.raw(".p2align 6")
    kd(a, "ored_kernel", 40, 40)
    open(sys.argv[1], "w").write(a.text())

main()
```

```python
import math, sys, struct, os

NS = 5
STAGES = 16
T_LOG2 = 10.0
C_SCALE = (128 ** -0.5) * math.log2(math.e)
NT_FLAG = " nt" if os.environ.get("KV_NT", "1") == "1" else ""
PART_OFF = 16 * 1024 * 1024

def f32bits(x):
    return struct.unpack("<I", struct.pack("<f", x))[0]

class Asm:
    def __init__(self):
        self.l = []
    def __call__(self, s):
        if s.endswith(":") and "\n" not in s:
            self.l.append(s)
        else:
            self.l.append("    " + s)
    def label(self, s):
        self.l.append(s + ":")
    def raw(self, s):
        self.l.append(s)
    def text(self):
        return "\n".join(self.l) + "\n"

def vr(b, n=None):
    return f"v{b}" if n is None else f"v[{b}:{b+n-1}]"
def ar(b, n=None):
    return f"a{b}" if n is None else f"a[{b}:{b+n-1}]"

def srd(a, d, lo, hi, addlo_sgpr, nrec):
    a(f"s_add_u32 s{d}, s{lo}, s{addlo_sgpr}")
    a(f"s_addc_u32 s{d+1}, s{hi}, 0")
    a(f"s_and_b32 s{d+1}, s{d+1}, 0xffff")
    a(f"s_mov_b32 s{d+2}, {nrec}")
    a(f"s_mov_b32 s{d+3}, 0x00020000")

TS = os.environ.get("TS", "0") == "1"
def stamp(a, idx, wavesel, wavereg="s16", pfx="TS"):
    if not TS: return
    a("s_memtime s[90:91]")
    a("s_load_dwordx2 s[92:93], s[0:1], 48")
    a("s_waitcnt lgkmcnt(0)")
    a(f"s_cmp_eq_u32 s2, {int(os.environ.get('TSWG', '0'))}")
    a(f"s_cbranch_scc0 {pfx}_SKIP_{idx}")
    a(f"s_cmp_eq_u32 {wavereg}, {wavesel}")
    a(f"s_cbranch_scc0 {pfx}_SKIP_{idx}")
    a("s_mov_b32 s94, 256")
    a("s_mov_b32 s95, 0x00020000")
    a("s_and_b32 s93, s93, 0xffff")
    a("v_mov_b32 v14, s90")
    a("v_mov_b32 v15, 0")
    a(f"buffer_store_dword v14, v15, s[92:95], 0 offen offset:{idx * 4}")
    a("s_waitcnt vmcnt(0)")
    a.label(f"{pfx}_SKIP_{idx}")

LT = []
def lstamp(a, k):
    if not TS: return
    a(f"s_memtime s[{60 + 2 * k}:{61 + 2 * k}]")
def ldump(a, n, wavesel, base, pfx, wavereg="s16"):
    if not TS: return
    a("s_load_dwordx2 s[92:93], s[0:1], 48")
    a("s_waitcnt lgkmcnt(0)")
    a(f"s_cmp_eq_u32 s2, {int(os.environ.get('TSWG', '0'))}")
    a(f"s_cbranch_scc0 {pfx}_LSKIP")
    a(f"s_cmp_eq_u32 {wavereg}, {wavesel}")
    a(f"s_cbranch_scc0 {pfx}_LSKIP")
    a("s_mov_b32 s94, 256")
    a("s_mov_b32 s95, 0x00020000")
    a("s_and_b32 s93, s93, 0xffff")
    a("v_mov_b32 v15, 0")
    for k in range(n):
        a(f"v_mov_b32 v14, s{60 + 2 * k}")
        a(f"buffer_store_dword v14, v15, s[92:95], 0 offen offset:{(base + k) * 4}")
        a("s_waitcnt vmcnt(0)")
    a.label(f"{pfx}_LSKIP")

def rstamp(a, kid, slot, wavesel, wavereg="s16", pfx="RS"):
    if os.environ.get("RTS") != "1": return
    a("s_memrealtime s[90:91]")
    a("s_load_dwordx2 s[92:93], s[0:1], 56")
    a("s_waitcnt lgkmcnt(0)")
    a(f"s_cmp_eq_u32 {wavereg}, {wavesel}")
    a(f"s_cbranch_scc0 {pfx}_{kid}_{slot}")
    a(f"s_add_u32 s92, s92, {64 * 1024 * 1024 + kid * 65536}")
    a("s_addc_u32 s93, s93, 0")
    a("s_mov_b32 s94, 65536")
    a("s_mov_b32 s95, 0x00020000")
    a("s_and_b32 s93, s93, 0xffff")
    a("s_lshl_b32 s91, s2, 4")
    a("v_mov_b32 v14, s90")
    a("v_mov_b32 v15, s91")
    a(f"buffer_store_dword v14, v15, s[92:95], 0 offen offset:{slot * 4}")
    a("s_waitcnt vmcnt(0)")
    a.label(f"{pfx}_{kid}_{slot}")

def cost(ins):
    if ins.endswith(":"): return 0.25
    if ins.startswith("v_exp") or ins.startswith("v_rcp"): return 2.0
    if ins.startswith("s_"): return 0.25
    if ins.startswith("ds_"): return 0.5
    return 1.0

def interleave(a, mf, va, lead=0):
    ab = os.environ.get("ABL", "")
    if "V" in ab: va = [x for x in va if not x.startswith("v_") or x.startswith("v_add_u32") or x.startswith("v_cmp")]
    if "E" in ab: va = [x for x in va if not x.startswith("v_exp")]
    if "D" in ab: va = [x for x in va if not x.startswith("ds_")]
    if "M" in ab: mf = ["s_nop 0"] * len(mf)
    n = len(mf)
    tot = sum(cost(x) for x in va)
    slots = n - lead
    vi = 0; acc = 0.0
    for k, m in enumerate(mf):
        a(m)
        if k >= lead:
            target = tot * (k - lead + 1) / slots
            while vi < len(va) and (acc + cost(va[vi]) * 0.5 <= target or k == n - 1):
                a(va[vi]); acc += cost(va[vi]); vi += 1
    while vi < len(va):
        a(va[vi]); vi += 1

def merge(main, extra, upto=1.0):
    out = []
    n = max(1, int(len(main) * upto))
    ei = 0
    for k, m in enumerate(main):
        out.append(m)
        if k < n:
            tgt = len(extra) * (k + 1) // n
            while ei < tgt:
                out.append(extra[ei]); ei += 1
    out += extra[ei:]
    return out

import re
def _regs(tok):
    m = re.match(r"([av])\[(\d+):(\d+)\]", tok)
    if m: return {(m.group(1), r) for r in range(int(m.group(2)), int(m.group(3)) + 1)}
    m = re.match(r"([av])(\d+)$", tok)
    if m: return {(m.group(1), int(m.group(2)))}
    return set()
LOOKOLD = 4
def auto_lgkm(body):
    n = len(body)
    two = body + body
    out_waits = {}
    last_write = {}
    ds_seq = 0
    done_upto = -1
    for idx, ins in enumerate(two):
        t = ins.strip()
        if t.startswith("ds_read") or t.startswith("ds_bpermute"):
            d = t.split()[1].rstrip(",")
            for r in _regs(d): last_write[r] = ds_seq
            ds_seq += 1
        elif t.startswith("s_waitcnt") and "lgkmcnt(0)" in t:
            done_upto = ds_seq - 1
        elif t.startswith("v_mfma"):
            ops = [x.strip() for x in t.split(None, 1)[1].split(",")]
            need = -1
            for o in ops[1:3]:
                for r in _regs(o):
                    if r in last_write: need = max(need, last_write[r])
            if need > done_upto:
                cnt = 0
                for ins2 in two[idx + 1: idx + 60]:
                    t2 = ins2.strip()
                    if t2.startswith("v_mfma"):
                        cnt += 1
                        if cnt > 8: break
                        ops2 = [x.strip() for x in t2.split(None, 1)[1].split(",")]
                        for o in ops2[1:3]:
                            for r in _regs(o):
                                if r in last_write and last_write[r] <= ds_seq - 1 - LOOKOLD: need = max(need, last_write[r])
                N = ds_seq - 1 - need
                N = min(N, 15)
                done_upto = ds_seq - 1 - N
                if idx >= n: out_waits[idx - n] = N
                else: out_waits.setdefault(idx, None)
    res = []
    for i, ins in enumerate(body):
        if out_waits.get(i) is not None:
            res.append(f"s_waitcnt lgkmcnt({out_waits[i]})")
        res.append(ins)
    return res

class Buf:
    def __init__(self): self.l = []
    def __call__(self, s): self.l.append(s)

def place(mf, fills):
    gaps = [[] for _ in mf]
    ab = os.environ.get("ABL", "")
    for (st, en, L) in fills:
        if "V" in ab: L = [x for x in L if not x.startswith("v_") or x.startswith("v_add_u32") or x.startswith("v_cmp")]
        if "E" in ab: L = [x for x in L if not x.startswith("v_exp")]
        if "P" in ab: L = [x for x in L if not (x.startswith("v_") and not x.startswith("v_exp")) or x.startswith("v_add_u32") or x.startswith("v_cmp")]
        if "D" in ab: L = [x for x in L if not x.startswith("ds_")]
        if "K" in ab: L = [x for x in L if not x.startswith("ds_read_b128")]
        if "T" in ab: L = [x for x in L if not x.startswith("ds_read_b64_tr")]
        if "N" in ab: L = [x.replace("ds_read_b64_tr_b16", "ds_read_b64") for x in L]
        if not L: continue
        tot = sum(cost(x) for x in L); acc = 0.0
        for x in L:
            pos = st + int((acc + cost(x) * 0.5) / tot * (en - st)) if tot > 0 else st
            pos = min(pos, en - 1)
            gaps[pos].append(x); acc += cost(x)
    out = []
    for m, g in zip(mf, gaps):
        out.append(m); out += g
    return out

def tr_addr_setup(a, dst, base_imm):
    a("v_lshrrev_b32 v5, 2, v2")
    a("v_and_b32 v6, 3, v2")
    a("v_lshl_add_u32 v7, v1, 3, v5")
    a("v_lshlrev_b32 v7, 8, v7")
    a("v_lshl_add_u32 v7, v6, 6, v7")
    if base_imm:
        a(f"v_add_u32 v7, {base_imm}, v7")
    for ih in range(4):
        a(f"v_xor_b32 v9, {ih}, v5")
        a(f"v_lshl_add_u32 v{dst + ih}, v9, 4, v7")

def gen_attn(a):
    a.raw(".globl attn_kernel")
    a.raw(".p2align 8")
    a.raw(".type attn_kernel,@function")
    a.label("attn_kernel")
    a("s_cmp_ge_u32 s2, 256")
    a("s_cbranch_scc1 A_END")
    a("s_load_dwordx8 s[4:11], s[0:1], 0")
    a("s_load_dwordx2 s[12:13], s[0:1], 56")
    if os.environ.get("MAPB", "1") == "1":
        a("s_lshr_b32 s14, s2, 5")
        a("s_and_b32 s15, s2, 31")
    else:
        a("s_and_b32 s14, s2, 7")
        a("s_lshr_b32 s15, s2, 3")
    a("v_lshrrev_b32 v1, 6, v0")
    a("v_and_b32 v0, 63, v0")
    a("s_nop 0")
    a("v_readfirstlane_b32 s16, v1")
    a("s_waitcnt lgkmcnt(0)")
    a("s_mul_i32 s17, s14, 147456")
    srd(a, 20, 4, 5, 17, 147456)
    a("s_lshl_b32 s17, s14, 5")
    a("s_add_u32 s17, s17, s15")
    a("s_lshl_b32 s17, s17, 18")
    srd(a, 24, 6, 7, 17, 262144)
    srd(a, 28, 8, 9, 17, 262144)
    a("s_lshl_b32 s17, s15, 8")
    a("s_sub_u32 s18, 4194304, s17")
    srd(a, 32, 10, 11, 17, "s18")
    a("s_mul_i32 s18, s14, 1179648")
    a("s_lshl_b32 s17, s15, 12")
    a("s_add_u32 s18, s18, s17")
    a("s_sub_u32 s19, 1179648, s17")
    srd(a, 36, 12, 13, 18, "s19")
    if os.environ.get("ROT", "1") == "1":
        a("s_lshl_b32 s46, s14, 1")
        a("s_lshr_b32 s47, s15, 3")
        a("s_mul_i32 s47, s47, 5")
        a("s_add_u32 s46, s46, s47")
    else:
        a("s_mov_b32 s46, 0")
    stamp(a, 0, 0)
    stamp(a, 8, 3)
    rstamp(a, 0, 0, 0)
    a("v_lshrrev_b32 v1, 4, v0")
    a("v_and_b32 v2, 15, v0")
    a("s_cmp_eq_u32 s16, 3")
    a("s_cbranch_scc1 A_LOADER")

    WQL = 98304
    a("s_mul_i32 s17, s16, 49152")
    a("v_lshrrev_b32 v4, 2, v0")
    a("v_lshlrev_b32 v4, 10, v4")
    a("v_and_b32 v5, 3, v0")
    a("v_lshl_add_u32 v4, v5, 4, v4")
    a("v_add_u32 v10, s17, v4")
    a("v_add_u32 v11, 16384, v10")
    a("v_add_u32 v12, 32768, v10")
    XR = 64
    XF = 16
    AF = 96
    QTA = 0
    def qt(t, i): return QTA + (t * 8 + i) * 4
    XLA = int(os.environ.get("XLA", "4"))
    def xl(c):
        L = [f"s_add_u32 s47, s46, {c}", "s_and_b32 s47, s47, 15", "s_lshl_b32 s47, s47, 6"]
        for t in range(3):
            L.append(f"buffer_load_dwordx4 {vr(XR + (c % 6) * 12 + t * 4, 4)}, v{10 + t}, s[20:23], s47 offen")
        return L
    for c in range(XLA):
        for x in xl(c): a(x)
    a("v_lshlrev_b32 v13, 4, v2")
    a("v_lshl_add_u32 v13, v1, 2, v13")
    TA = 56
    tr_addr_setup(a, TA, WQL)
    for i in range(96):
        a(f"v_accvgpr_write_b32 {ar(QTA + i)}, 0")
    def qreads(c):
        L = []
        if c < 16:
            for t in range(3):
                for e in range(4):
                    L.append(f"ds_bpermute_b32 v{XF + (c & 1) * 12 + t * 4 + e}, v13, v{XR + (c % 6) * 12 + t * 4 + e}")
            for i in range(8):
                for hh in range(2):
                    L.append(f"ds_read_b64_tr_b16 {ar(AF + (c & 1) * 32 + i * 4 + hh * 2, 2)}, v{TA + (i >> 1)} offset:{(c & 7) * 8192 + hh * 1024 + (i & 1) * 8}")
        return L
    MN = 136; THR = 148; LS = 151; CL = 154
    KA = 160; VA = 164; KA0 = 172; VA0 = 176
    EB = 184; TMP = 232; VF = 160
    for t in range(3):
        for r in range(4):
            a(f"v_mov_b32 {vr(MN + t * 4 + r)}, 0")
        a(f"v_mov_b32 {vr(THR + t)}, -1.0")
        a(f"v_mov_b32 {vr(CL + t)}, 0xff800000")
        a(f"v_mov_b32 {vr(LS + t)}, 0")
    for i in range(64):
        a(f"v_accvgpr_write_b32 {ar(VF + i)}, 0")
    a("v_and_b32 v5, 3, v2")
    a("v_lshlrev_b32 v5, 2, v5")
    a("v_lshrrev_b32 v6, 2, v2")
    a("v_or_b32 v5, v5, v6")
    a("v_lshlrev_b32 v6, 2, v1")
    a("v_xor_b32 v5, v5, v6")
    for s in range(4):
        a(f"v_xor_b32 v6, {s}, v5")
        a(f"v_lshlrev_b32 v6, 4, v6")
        a(f"v_lshl_add_u32 {vr(KA0 + s)}, v2, 8, v6")
    a("v_lshrrev_b32 v5, 2, v2")
    a("v_and_b32 v6, 3, v2")
    a("v_lshl_add_u32 v7, v1, 2, v5")
    a("v_and_b32 v8, 7, v7")
    a("v_lshlrev_b32 v7, 8, v7")
    a("v_lshrrev_b32 v9, 1, v6")
    a("v_lshl_add_u32 v7, v9, 4, v7")
    a("v_and_b32 v9, 1, v6")
    a("v_lshl_add_u32 v7, v9, 3, v7")
    a("v_add_u32 v7, 16384, v7")
    for i in range(8):
        a(f"v_xor_b32 v9, {i}, v8")
        a(f"v_lshl_add_u32 {vr(VA0 + i)}, v9, 5, v7")
    for e in range(16):
        a(f"v_mov_b32 v{EB + 32 + e}, 0")
    for e in range(8):
        a(f"v_mov_b32 v{TMP + 16 + e}, 0")
    a(f"v_mov_b32 v{THR + 2}, 1.0")
    a(f"s_waitcnt vmcnt({3 * (XLA - 1)})")
    a("s_barrier")
    for x in qreads(0): a(x)
    for c in range(16):
        a(f"s_waitcnt lgkmcnt(0) vmcnt({max(0, 3 * (min(16, c + XLA) - (c + 2)))})")
        if TS and os.environ.get("QTS") == "1" and c < 14:
            lstamp(a, c)
        a("s_barrier")
        mf = [f"v_mfma_f32_16x16x32_bf16 {ar(qt(t, i), 4)}, {ar(AF + (c & 1) * 32 + i * 4, 4)}, {vr(XF + (c & 1) * 12 + t * 4, 4)}, {ar(qt(t, i), 4)}"
              for i in range(8) for t in range(3)]
        for x in place(mf, [(0, 20, qreads(c + 1)), (16, 24, xl(c + XLA) if c + XLA < 16 else [])]):
            a(x)
    a("s_nop 7")
    QF = 16
    def qf(t, s): return QF + (t * 4 + s) * 4
    for t in range(3):
        for s in range(4):
            for p in range(4):
                src = qt(t, 2 * s + (p >> 1)) + (p & 1) * 2
                a(f"v_accvgpr_read_b32 v8, {ar(src)}")
                a(f"v_accvgpr_read_b32 v9, {ar(src + 1)}")
                a(f"v_mul_f32 v8, {f32bits(C_SCALE):#x}, v8")
                a(f"v_mul_f32 v9, {f32bits(C_SCALE):#x}, v9")
                a(f"v_cvt_pk_bf16_f32 {vr(qf(t, s) + p)}, v8, v9")
    a("s_waitcnt vmcnt(0)")
    stamp(a, 1, 0)
    SB = 64; PB = 112
    MN = 136
    THR = 148; LS = 151; CL = 154
    KA = 160; VA = 164; KA0 = 172; VA0 = 176
    EB = 184
    TMP = 232
    OA = 0; KF = 96; VF = 160
    def sreg(t, kt): return SB + (t * 4 + kt) * 4
    def preg(t, u): return PB + (t * 2 + u) * 4
    def oreg(t, i): return OA + (t * 8 + i) * 4
    def kf(kt, s): return KF + (kt * 4 + s) * 4
    def vf(i, u): return VF + (i * 2 + u) * 4
    for i in range(96):
        a(f"v_accvgpr_write_b32 {ar(OA + i)}, 0")
    a(f"s_mov_b32 s50, {f32bits(2.0 ** T_LOG2):#x}")

    def qk(t):
        L = []
        order = [(kt, s) for kt in range(4) for s in range(4)]
        if os.environ.get("QKO") == "1":
            order = [(kp * 2 + k2, s) for kp in range(2) for s in range(4) for k2 in range(2)]
        for (kt, s) in order:
            if True:
                c = vr(MN + t * 4, 4) if s == 0 else vr(sreg(t, kt), 4)
                L.append(f"v_mfma_f32_16x16x32_bf16 {vr(sreg(t, kt), 4)}, {ar(kf(kt, s), 4)}, {vr(qf(t, s), 4)}, {c}")
        return L
    def pv(t):
        L = []
        for u in range(2):
            for i in range(8):
                L.append(f"v_mfma_f32_16x16x32_bf16 {ar(oreg(t, i), 4)}, {ar(vf(i, u), 4)}, {vr(preg(t, u), 4)}, {ar(oreg(t, i), 4)}")
        return L
    def sumtree(t):
        E = EB + t * 16; T = TMP + t * 8
        return
    def sm1(t):
        S = sreg(t, 0); E = EB + t * 16; T = TMP + t * 8
        L = []
        for e in range(16):
            L.append(f"v_exp_f32 v{E+e}, v{S+e}")
            if e in (3, 5, 7, 9):
                k = (e - 3)
                L.append(f"v_add_f32 v{T + k // 2}, v{E+k}, v{E+k+1}")
        return L
    def sm2(t, tail=False):
        S = sreg(t, 0); E = EB + t * 16; T = TMP + t * 8
        L = []
        for k in (8, 10, 12, 14):
            L.append(f"v_add_f32 v{T + k // 2}, v{E+k}, v{E+k+1}")
        L += [f"v_add_f32 v{T}, v{T}, v{T+1}", f"v_add_f32 v{T+2}, v{T+2}, v{T+3}",
              f"v_add_f32 v{T+4}, v{T+4}, v{T+5}", f"v_add_f32 v{T+6}, v{T+6}, v{T+7}",
              f"v_add_f32 v{T}, v{T}, v{T+2}", f"v_add_f32 v{T+4}, v{T+4}, v{T+6}",
              f"v_add_f32 v{T}, v{T}, v{T+4}",
              f"v_cmp_gt_f32 vcc, v{T}, v{THR+t}",
              f"s_cbranch_vccnz A_SLOW_{t}{'T' if tail else ''}\nA_BACK_{t}{'T' if tail else ''}:",
              f"v_add_f32 v{LS+t}, v{LS+t}, v{T}"]
        for q in range(8):
            L.append(f"v_cvt_pk_bf16_f32 v{preg(t, 0) + q}, v{E+2*q}, v{E+2*q+1}")
        return L
    def kreads():
        return [f"ds_read_b128 {ar(kf(kt, s), 4)}, {vr(KA + s)} offset:{kt * 4096}" for kt in range(4) for s in range(4)]
    def vreads():
        return [f"ds_read_b64_tr_b16 {ar(vf(i, u) + hh * 2, 2)}, {vr(VA + i)} offset:{(2 * u + hh) * 4096}"
                for u in range(2) for i in range(8) for hh in range(2)]
    a("s_mov_b32 s17, 0")
    a("s_mov_b32 s18, 0")
    for s in range(4):
        a(f"v_mov_b32 {vr(KA + s)}, {vr(KA0 + s)}")
    a("s_barrier")
    stamp(a, 2, 0)
    KR = kreads(); VR = vreads()
    for x in KR[:12]:
        a(x)
    a("s_waitcnt lgkmcnt(0)")
    vaddr = [f"v_add_u32 {vr(VA + i)}, s17, {vr(VA0 + i)}" for i in range(8)]
    kaddr = [f"v_add_u32 {vr(KA + s)}, s17, {vr(KA0 + s)}" for s in range(4)]
    body = []
    body += place(qk(0), [(0, 6, KR[12:16]), (0, 16, sm2(2) + ["s_cmp_eq_u32 s18, 0", "s_cbranch_scc1 A_FIX\nA_FIXBACK:"])])
    body += ["s_nop 1"]
    body += place(pv(2), [(0, 4, vaddr), (2, 16, sm1(0)), (8, 16, VR[:16])])
    body += place(qk(1), [(0, 16, sm2(0)), (0, 12, VR[16:])])
    body += ["s_add_u32 s17, s17, 32768", "s_cmp_eq_u32 s17, 163840", "s_cselect_b32 s17, 0, s17"]
    body += place(pv(0), [(0, 2, kaddr), (1, 16, sm1(1))])
    if os.environ.get("NOBAR") != "1":
        body += ["s_barrier"]
    body += place(qk(2), [(0, 16, sm2(1)), (4, 8, KR[0:4]), (8, 12, KR[4:8])])
    body += ["s_nop 1"]
    body += place(pv(1), [(2, 16, sm1(2)), (0, 8, KR[8:12])])
    body += ["s_add_u32 s18, s18, 1", "s_cmp_lt_u32 s18, 16"]
    body = auto_lgkm(body)
    if os.environ.get("KVARCH") == "1":
        def remap(m):
            lo, hi = int(m.group(1)), int(m.group(2))
            if lo >= 96:
                lo2 = 16 + (lo - 96) % 48
                return f"v[{lo2}:{lo2 + hi - lo}]"
            return m.group(0)
        body = [re.sub(r"a\[(\d+):(\d+)\]", remap, x) for x in body]
    a.label("A_LOOP")
    for x in body:
        a(x)
    a("s_cbranch_scc1 A_LOOP")
    stamp(a, 3, 0)
    a("s_nop 1")
    for x in sm2(2, True):
        a(x)
    a("s_nop 1")
    for x in pv(2):
        a(x)
    a("s_waitcnt lgkmcnt(0)")
    a("s_nop 15")
    a("s_mul_i32 s17, s16, 393216")
    a("v_lshrrev_b32 v5, 1, v1")
    a("v_lshlrev_b32 v5, 8, v5")
    a("v_lshl_add_u32 v5, v2, 4, v5")
    a("v_and_b32 v6, 1, v1")
    a("v_lshl_add_u32 v5, v6, 3, v5")
    a("v_add_u32 v5, s17, v5")
    a("s_mov_b32 s42, 0")
    a("s_mov_b32 s43, 131072")
    a("s_mov_b32 s44, 262144")
    for t in range(3):
        a(f"v_mov_b32 v{TMP}, v{LS+t}")
        a(f"v_mov_b32 v{TMP+1}, v{LS+t}")
        a("s_nop 1")
        a(f"v_permlane32_swap_b32 v{TMP}, v{TMP+1}")
        a(f"v_add_f32 v{TMP}, v{TMP}, v{TMP+1}")
        a(f"v_mov_b32 v{TMP+1}, v{TMP}")
        a("s_nop 1")
        a(f"v_permlane16_swap_b32 v{TMP}, v{TMP+1}")
        a(f"v_add_f32 v{TMP}, v{TMP}, v{TMP+1}")
        a(f"v_rcp_f32 v{TMP}, v{TMP}")
        a("s_nop 0")
        for i in range(8):
            for r in range(4):
                a(f"v_accvgpr_read_b32 v{TMP+2+r}, {ar(oreg(t, i) + r)}")
            for r in range(4):
                a(f"v_mul_f32 v{TMP+2+r}, v{TMP+2+r}, v{TMP}")
            d = 64 + (t * 8 + i) * 2
            a(f"v_cvt_pk_bf16_f32 v{d}, v{TMP+2}, v{TMP+3}")
            a(f"v_cvt_pk_bf16_f32 v{d+1}, v{TMP+4}, v{TMP+5}")
            a(f"buffer_store_dwordx2 {vr(d, 2)}, v5, s[36:39], s{42+t} offen offset:{(i & 1) * 512 + (i >> 1) * 1024}{os.environ.get('OST', '')}")
    if TS:
        a("s_waitcnt vmcnt(0)")
    stamp(a, 4, 0)
    if os.environ.get("RTS") == "1": a("s_waitcnt vmcnt(0)")
    rstamp(a, 0, 1, 0)
    if os.environ.get("QTS") == "1":
        ldump(a, 14, 0, 16, "TQ")
    a("s_branch A_END")
    a.label("A_FIX")
    a(f"v_mov_b32 v{THR + 2}, -1.0")
    a("s_branch A_FIXBACK")
    for (t, sfx) in ((0, ""), (1, ""), (2, ""), (2, "T")):
        S = sreg(t, 0); E = EB + t * 16; T = TMP + t * 8
        a.label(f"A_SLOW_{t}{sfx}")
        a(f"v_max3_f32 v{T}, v{S}, v{S+1}, v{S+2}")
        a(f"v_max3_f32 v{T+1}, v{S+3}, v{S+4}, v{S+5}")
        a(f"v_max3_f32 v{T+2}, v{S+6}, v{S+7}, v{S+8}")
        a(f"v_max3_f32 v{T+3}, v{S+9}, v{S+10}, v{S+11}")
        a(f"v_max3_f32 v{T}, v{T}, v{T+1}, v{T+2}")
        a(f"v_max3_f32 v{T+4}, v{S+12}, v{S+13}, v{S+14}")
        a(f"v_max3_f32 v{T}, v{T}, v{T+3}, v{S+15}")
        a(f"v_max_f32 v{T}, v{T}, v{T+4}")
        a(f"v_mov_b32 v{T+1}, v{T}")
        a("s_nop 1")
        a(f"v_permlane32_swap_b32 v{T}, v{T+1}")
        a(f"v_max_f32 v{T}, v{T}, v{T+1}")
        a(f"v_mov_b32 v{T+1}, v{T}")
        a("s_nop 1")
        a(f"v_permlane16_swap_b32 v{T}, v{T+1}")
        a(f"v_max3_f32 v{T}, v{T}, v{T+1}, v{CL+t}")
        a(f"v_mov_b32 v{CL+t}, 0")
        a(f"v_mov_b32 v{THR+t}, s50")
        a(f"v_sub_f32 v{T+1}, 0, v{T}")
        a(f"v_exp_f32 v{T+1}, v{T+1}")
        for r in range(4):
            a(f"v_sub_f32 v{MN + t * 4 + r}, v{MN + t * 4 + r}, v{T}")
        a(f"v_min_f32 v{T+1}, v{T+1}, s50")
        a(f"v_mul_f32 v{LS+t}, v{LS+t}, v{T+1}")
        a("s_nop 7")
        for i in range(32):
            a(f"v_accvgpr_read_b32 v{T+2+(i&3)}, {ar(oreg(t, 0) + i)}")
            a(f"v_mul_f32 v{T+2+(i&3)}, v{T+2+(i&3)}, v{T+1}")
            a(f"v_accvgpr_write_b32 {ar(oreg(t, 0) + i)}, v{T+2+(i&3)}")
        for e in range(16):
            a(f"v_sub_f32 v{E+e}, v{S+e}, v{T}")
        for e in range(16):
            a(f"v_exp_f32 v{E+e}, v{E+e}")
        a("s_nop 0")
        a(f"v_add_f32 v{T}, v{E}, v{E+1}")
        for e in range(2, 16):
            a(f"v_add_f32 v{T}, v{T}, v{E+e}")
        a(f"s_branch A_BACK_{t}{sfx}")

    a.label("A_LOADER")
    for q in range(4):
        a(f"v_lshlrev_b32 v3, 2, v1")
        a(f"v_or_b32 v3, {q}, v3")
        a(f"v_xor_b32 v3, v3, v2")
        a(f"v_lshlrev_b32 v3, 4, v3")
        a(f"v_lshl_add_u32 v{4+q}, v1, 8, v3")
    for p in range(2):
        a(f"v_or_b32 v3, {p << 2}, v1")
        a(f"v_lshlrev_b32 v3, 1, v3")
        a(f"v_xor_b32 v3, v3, v2")
        a(f"v_lshlrev_b32 v3, 4, v3")
        a(f"v_lshl_add_u32 v{8+p}, v1, 8, v3")
    def issue_stage(bar_every2):
        for kv in range(2):
            for G in range(4):
                a("s_waitcnt vmcnt(59)")
                a(f"s_add_u32 m0, s40, {kv * 16384 + G * 4096}")
                a(f"s_add_u32 s17, s41, {G * 4096}")
                for q in range(4):
                    vo = 4 + q if kv == 0 else 8 + (q & 1)
                    sr = "s[24:27]" if kv == 0 else "s[28:31]"
                    if os.environ.get("NOKV", "0") != "1":
                        a(f"buffer_load_dwordx4 v{vo}, {sr}, s17 offen offset:{q * 1024}{NT_FLAG} lds")
                if bar_every2 and (G & 1):
                    a("s_barrier")
        a("s_add_u32 s41, s41, 16384")
        a("s_add_u32 s40, s40, 32768")
        a("s_cmp_eq_u32 s40, 163840")
        a("s_cselect_b32 s40, 0, s40")
    a("v_xor_b32 v3, v2, v1")
    a("v_lshlrev_b32 v3, 4, v3")
    a("v_lshl_add_u32 v10, v1, 13, v3")
    ops = []
    def throttle(k):
        a(f"s_waitcnt vmcnt({63 - k})")
    def wq_chunk(c):
        for half in range(2):
            throttle(4)
            a(f"s_mov_b32 m0, {98304 + (c & 7) * 8192 + half * 4096}")
            a(f"s_add_u32 s47, s46, {c}")
            a("s_and_b32 s47, s47, 15")
            a("s_lshl_b32 s47, s47, 18")
            for q in range(4):
                n = half * 4 + q
                a(f"s_add_u32 s17, s47, {(4 * n) * 8192 - q * 1024}")
                if os.environ.get("NOWQ") != "1":
                    a(f"buffer_load_dwordx4 v10, s[32:35], s17 offen offset:{q * 1024} lds")
                    ops.append(("wq", c))
    def kv_group(st, kv, G):
        throttle(4)
        a(f"s_mov_b32 m0, {(st % NS) * 32768 + kv * 16384 + G * 4096}")
        a(f"s_mov_b32 s17, {st * 16384 + G * 4096}")
        for q in range(4):
            vo = 4 + q if kv == 0 else 8 + (q & 1)
            sr = "s[24:27]" if kv == 0 else "s[28:31]"
            if os.environ.get("NOKV", "0") != "1":
                a(f"buffer_load_dwordx4 v{vo}, {sr}, s17 offen offset:{q * 1024}{NT_FLAG} lds")
                ops.append(("kv", st))
    def wait_for(tag):
        last = max(i for i, o in enumerate(ops) if o == tag) if tag in ops else None
        if last is None: return
        n = len(ops) - 1 - last
        if n < 63: a(f"s_waitcnt vmcnt({n})")
    kvq = [(st, kv, G) for st in range(3) for kv in range(2) for G in range(4)]
    KVS = int(os.environ.get("KVS", "9")); KVR = int(os.environ.get("KVR", "3"))
    for c in range(3): wq_chunk(c)
    if KVS == 0:
        kv_group(*kvq.pop(0)); kv_group(*kvq.pop(0))
    for c in range(3, 8): wq_chunk(c)
    for c in range(17):
        if c < 16: wait_for(("wq", c))
        a("s_barrier")
        if c >= 1 and c + 7 < 16: wq_chunk(c + 7)
        if c >= KVS:
            for e in range(KVR):
                if kvq: kv_group(*kvq.pop(0))
    while kvq: kv_group(*kvq.pop(0))
    stamp(a, 9, 3)
    wait_for(("kv", 0))
    a("s_barrier")
    if os.environ.get("NOBAR") == "1":
        a("s_branch A_END")
    a("s_mov_b32 s40, 98304")
    a("s_mov_b32 s41, 49152")
    a("s_mov_b32 s42, 3")
    issue_stage(False)
    a("s_mov_b32 s42, 4")
    a("s_branch A_LENTRY")
    a.label("A_LLOOP")
    a("s_barrier")
    a.label("A_LENTRY")
    issue_stage(False)
    a("s_add_u32 s42, s42, 1")
    a("s_cmp_lt_u32 s42, 16")
    a("s_cbranch_scc1 A_LLOOP")
    stamp(a, 10, 3)
    a("s_barrier")
    a("s_barrier")
    a("s_waitcnt vmcnt(32)")
    a("s_barrier")
    a("s_waitcnt vmcnt(0)")
    stamp(a, 11, 3)
    a("s_barrier")
    a("s_barrier")
    a.label("A_END")
    a("s_endpgm")

def gen_oproj(a):
    a.raw(".globl oproj_kernel")
    a.raw(".p2align 8")
    a.raw(".type oproj_kernel,@function")
    a.label("oproj_kernel")
    a("s_cmp_ge_u32 s2, 256")
    a("s_cbranch_scc1 O_END")
    a("s_load_dwordx2 s[4:5], s[0:1], 32")
    a("s_load_dwordx2 s[8:9], s[0:1], 56")
    a("s_and_b32 s18, s2, 7")
    a("s_lshr_b32 s15, s2, 3")
    a("s_and_b32 s14, s15, 7")
    a("s_lshr_b32 s17, s15, 3")
    a("v_lshrrev_b32 v1, 6, v0")
    a("v_and_b32 v0, 63, v0")
    a("s_nop 0")
    a("v_readfirstlane_b32 s16, v1")
    a("s_waitcnt lgkmcnt(0)")
    a("s_lshl_b32 s19, s18, 19")
    a("s_lshl_b32 s20, s17, 8")
    a("s_add_u32 s19, s19, s20")
    a("s_sub_u32 s20, 524288, s20")
    srd(a, 24, 4, 5, 19, "s20")
    a("s_mul_i32 s19, s14, 1179648")
    a("s_lshl_b32 s20, s18, 14")
    a("s_add_u32 s19, s19, s20")
    a("s_sub_u32 s20, 1179648, s20")
    srd(a, 28, 8, 9, 19, "s20")
    a("s_lshl_b32 s19, s18, 3")
    a("s_add_u32 s19, s19, s14")
    a("s_mul_i32 s19, s19, 36")
    a("s_add_u32 s19, s19, s17")
    a("s_lshl_b32 s19, s19, 13")
    a(f"s_add_u32 s19, s19, {PART_OFF}")
    a("s_lshl_b32 s20, s17, 13")
    a("s_sub_u32 s20, 294912, s20")
    srd(a, 32, 8, 9, 19, "s20")
    stamp(a, 0, 0, pfx="TO")
    rstamp(a, 1, 0, 0)
    a("v_lshrrev_b32 v1, 4, v0")
    a("v_and_b32 v2, 15, v0")
    a("s_lshl_b32 s40, s14, 1")
    a("s_mul_i32 s41, s17, 5")
    a("s_add_u32 s40, s40, s41")
    a("v_xor_b32 v3, v2, v1")
    a("v_lshlrev_b32 v3, 4, v3")
    a("v_lshl_add_u32 v3, v1, 10, v3")
    a("s_lshl_b32 s19, s16, 13")
    a("v_add_u32 v3, s19, v3")
    a("v_add_u32 v12, 3072, v3")
    a("s_lshl_b32 s21, s16, 11")
    BF = 64
    a("s_mul_i32 s19, s16, 393216")
    a("v_lshlrev_b32 v4, 4, v0")
    a("v_add_u32 v4, s19, v4")
    a("v_add_u32 v10, 0x20000, v4")
    a("v_add_u32 v11, 0x40000, v4")
    vb = [4, 10, 11]
    def o_issue(c, withb):
        a(f"s_add_u32 s41, s40, {c}")
        a("s_and_b32 s41, s41, 15")
        a("s_lshl_b32 s42, s41, 15")
        a("s_lshl_b32 s43, s41, 10")
        a(f"s_add_u32 m0, s21, {c * 8192}")
        a("s_nop 0")
        a(f"buffer_load_dwordx4 v3, s[24:27], s42 offen lds")
        a(f"buffer_load_dwordx4 v12, s[24:27], s42 offen offset:1024 lds")
        if withb:
            for t in range(3):
                a(f"buffer_load_dwordx4 {ar(BF + (c * 3 + t) * 4, 4)}, v{vb[t]}, s[28:31], s43 offen")
    a("s_cmp_eq_u32 s16, 3")
    a("s_cbranch_scc1 O_LOADER")
    PRE = int(os.environ.get('PRE', '4'))
    for c in range(PRE):
        o_issue(c, True)
    TA = 56
    tr_addr_setup(a, TA, 0)
    ACC = 64; AF = 0
    def acc(t, i): return ACC + (t * 8 + i) * 4
    for e in range(96):
        a(f"v_mov_b32 v{ACC + e}, 0")
    for ih in range(4):
        a(f"v_add_u32 v{60 + ih}, 0x10000, v{TA + ih}")
    issued = PRE
    for c in range(16):
        if c % 2 == 0:
            a(f"s_waitcnt vmcnt({5 * (issued - (c + 2))})")
            a("s_barrier")
            lstamp(a, c // 2)
            for e in range(2):
                if issued < 16:
                    o_issue(issued, True); issued += 1
        ab = AF + (c & 1) * 32
        base = TA if c < 8 else 60
        for i in range(8):
            for hh in range(2):
                a(f"ds_read_b64_tr_b16 {ar(ab + i * 4 + hh * 2, 2)}, v{base + (i >> 1)} offset:{(c & 7) * 8192 + hh * 1024 + (i & 1) * 8}")
        for i in range(8):
            a(f"s_waitcnt lgkmcnt({min(15, 14 - 2 * i)})")
            for t in range(3):
                a(f"v_mfma_f32_16x16x32_bf16 {vr(acc(t, i), 4)}, {ar(ab + i * 4, 4)}, {ar(BF + (c * 3 + t) * 4, 4)}, {vr(acc(t, i), 4)}")
    a("s_nop 15")
    stamp(a, 6, 0, pfx="TO")
    a("s_mul_i32 s19, s16, 98304")
    a("v_lshlrev_b32 v3, 4, v0")
    a("v_add_u32 v3, s19, v3")
    for t in range(3):
        a(f"s_mov_b32 s19, {t * 32768}")
        a(f"s_mov_b32 s20, {t * 32768 + 4096}")
        for i in range(8):
            a(f"buffer_store_dwordx4 {vr(acc(t, i), 4)}, v3, s[32:35], s{19 + (i >> 2)} offen offset:{(i & 3) * 1024}{os.environ.get('PST', ' sc0 sc1')}")
    if TS:
        a("s_waitcnt vmcnt(0)")
    stamp(a, 1, 0, pfx="TO")
    if os.environ.get("RTS") == "1": a("s_waitcnt vmcnt(0)")
    rstamp(a, 1, 1, 0)
    ldump(a, 8, 0, 16, "TO")
    a("s_branch O_END")
    a.label("O_LOADER")
    for c in range(16):
        o_issue(c, False)
    for c in range(0, 16, 2):
        a(f"s_waitcnt vmcnt({32 - 2 * (c + 2)})")
        a("s_barrier")
    a.label("O_END")
    a("s_endpgm")

def gen_ored(a):
    a.raw(".globl ored_kernel")
    a.raw(".p2align 8")
    a.raw(".type ored_kernel,@function")
    a.label("ored_kernel")
    a("s_cmp_ge_u32 s2, 576")
    a("s_cbranch_scc1 R_END")
    a("s_load_dwordx2 s[4:5], s[0:1], 40")
    a("s_load_dwordx2 s[8:9], s[0:1], 56")
    a("v_lshrrev_b32 v1, 6, v0")
    a("v_and_b32 v0, 63, v0")
    a("s_nop 0")
    a("v_readfirstlane_b32 s16, v1")
    a("s_waitcnt lgkmcnt(0)")
    rstamp(a, 2, 0, 0)
    a("s_lshl_b32 s17, s2, 2")
    a("s_add_u32 s17, s17, s16")
    a("s_and_b32 s18, s17, 7")
    a("s_lshr_b32 s19, s17, 3")
    a("s_lshl_b32 s20, s17, 10")
    a(f"s_add_u32 s21, s20, {PART_OFF}")
    a(f"s_sub_u32 s22, {8 * 288 * 8192}, s20")
    srd(a, 24, 8, 9, 21, "s22")
    a("v_lshlrev_b32 v3, 4, v0")
    for k in range(8):
        a(f"s_mov_b32 s{32 + k}, {k * 288 * 8192}")
        a(f"buffer_load_dwordx4 {vr(8 + k * 4, 4)}, v3, s[24:27], s{32 + k} offen")
    a("s_lshr_b32 s20, s19, 2")
    a("s_lshl_b32 s20, s20, 14")
    a("s_and_b32 s21, s19, 3")
    a("s_lshl_b32 s21, s21, 8")
    a("s_add_u32 s20, s20, s21")
    a("s_lshl_b32 s21, s18, 3")
    a("s_add_u32 s20, s20, s21")
    a(f"s_sub_u32 s22, 1179648, s20")
    srd(a, 28, 4, 5, 20, "s22")
    a("v_lshrrev_b32 v1, 4, v0")
    a("v_and_b32 v2, 15, v0")
    a("v_lshlrev_b32 v4, 10, v2")
    a("v_lshl_add_u32 v4, v1, 6, v4")
    for k in range(1, 8):
        a(f"s_waitcnt vmcnt({7 - k})")
        for r in range(4):
            a(f"v_add_f32 v{8 + r}, v{8 + r}, v{8 + k * 4 + r}")
    a("v_cvt_pk_bf16_f32 v6, v8, v9")
    a("v_cvt_pk_bf16_f32 v7, v10, v11")
    a("buffer_store_dwordx2 v[6:7], v4, s[28:31], 0 offen")
    if os.environ.get("RTS") == "1": a("s_waitcnt vmcnt(0)")
    rstamp(a, 2, 1, 0)
    a.label("R_END")
    a("s_endpgm")

def kd(a, name, nfv, accum, sgpr=96):
    a.raw(f".amdhsa_kernel {name}")
    a.raw(f"  .amdhsa_next_free_vgpr {nfv}")
    a.raw(f"  .amdhsa_next_free_sgpr {sgpr}")
    a.raw(f"  .amdhsa_accum_offset {accum}")
    a.raw("  .amdhsa_group_segment_fixed_size 0")
    a.raw("  .amdhsa_kernarg_size 64")
    a.raw("  .amdhsa_user_sgpr_count 2")
    a.raw("  .amdhsa_user_sgpr_kernarg_segment_ptr 1")
    a.raw("  .amdhsa_system_sgpr_workgroup_id_x 1")
    a.raw(".end_amdhsa_kernel")

def main():
    a = Asm()
    a.raw("; @launch kernel=attn_kernel grid=(256,1,1) block=(256,1,1) lds=163840")
    a.raw("; @launch kernel=oproj_kernel grid=(256,1,1) block=(256,1,1) lds=131072")
    a.raw("; @launch kernel=ored_kernel grid=(576,1,1) block=(256,1,1) lds=0")
    a.raw('.amdgcn_target "amdgcn-amd-amdhsa--gfx950"')
    a.raw(".text")
    gen_attn(a)
    gen_oproj(a)
    gen_ored(a)
    a.raw('.section .rodata,"a"')
    a.raw(".p2align 6")
    kd(a, "attn_kernel", 480, 256)
    a.raw(".p2align 6")
    kd(a, "oproj_kernel", 512, 256)
    a.raw(".p2align 6")
    kd(a, "ored_kernel", 40, 40)
    open(sys.argv[1], "w").write(a.text())

main()
```

```python
import math, sys, struct, os

NS = 5
STAGES = 16
T_LOG2 = 10.0
C_SCALE = (128 ** -0.5) * math.log2(math.e)
NT_FLAG = " nt" if os.environ.get("KV_NT", "1") == "1" else ""
PART_OFF = 16 * 1024 * 1024

def f32bits(x):
    return struct.unpack("<I", struct.pack("<f", x))[0]

class Asm:
    def __init__(self):
        self.l = []
    def __call__(self, s):
        if s.endswith(":") and "\n" not in s:
            self.l.append(s)
        else:
            self.l.append("    " + s)
    def label(self, s):
        self.l.append(s + ":")
    def raw(self, s):
        self.l.append(s)
    def text(self):
        return "\n".join(self.l) + "\n"

def vr(b, n=None):
    return f"v{b}" if n is None else f"v[{b}:{b+n-1}]"
def ar(b, n=None):
    return f"a{b}" if n is None else f"a[{b}:{b+n-1}]"

def srd(a, d, lo, hi, addlo_sgpr, nrec):
    a(f"s_add_u32 s{d}, s{lo}, s{addlo_sgpr}")
    a(f"s_addc_u32 s{d+1}, s{hi}, 0")
    a(f"s_and_b32 s{d+1}, s{d+1}, 0xffff")
    a(f"s_mov_b32 s{d+2}, {nrec}")
    a(f"s_mov_b32 s{d+3}, 0x00020000")

TS = os.environ.get("TS", "0") == "1"
def stamp(a, idx, wavesel, wavereg="s16", pfx="TS"):
    if not TS: return
    a("s_memtime s[90:91]")
    a("s_load_dwordx2 s[92:93], s[0:1], 48")
    a("s_waitcnt lgkmcnt(0)")
    a(f"s_cmp_eq_u32 s2, {int(os.environ.get('TSWG', '0'))}")
    a(f"s_cbranch_scc0 {pfx}_SKIP_{idx}")
    a(f"s_cmp_eq_u32 {wavereg}, {wavesel}")
    a(f"s_cbranch_scc0 {pfx}_SKIP_{idx}")
    a("s_mov_b32 s94, 256")
    a("s_mov_b32 s95, 0x00020000")
    a("s_and_b32 s93, s93, 0xffff")
    a("v_mov_b32 v14, s90")
    a("v_mov_b32 v15, 0")
    a(f"buffer_store_dword v14, v15, s[92:95], 0 offen offset:{idx * 4}")
    a("s_waitcnt vmcnt(0)")
    a.label(f"{pfx}_SKIP_{idx}")

LT = []
def lstamp(a, k):
    if not TS: return
    a(f"s_memtime s[{60 + 2 * k}:{61 + 2 * k}]")
def ldump(a, n, wavesel, base, pfx, wavereg="s16"):
    if not TS: return
    a("s_load_dwordx2 s[92:93], s[0:1], 48")
    a("s_waitcnt lgkmcnt(0)")
    a(f"s_cmp_eq_u32 s2, {int(os.environ.get('TSWG', '0'))}")
    a(f"s_cbranch_scc0 {pfx}_LSKIP")
    a(f"s_cmp_eq_u32 {wavereg}, {wavesel}")
    a(f"s_cbranch_scc0 {pfx}_LSKIP")
    a("s_mov_b32 s94, 256")
    a("s_mov_b32 s95, 0x00020000")
    a("s_and_b32 s93, s93, 0xffff")
    a("v_mov_b32 v15, 0")
    for k in range(n):
        a(f"v_mov_b32 v14, s{60 + 2 * k}")
        a(f"buffer_store_dword v14, v15, s[92:95], 0 offen offset:{(base + k) * 4}")
        a("s_waitcnt vmcnt(0)")
    a.label(f"{pfx}_LSKIP")

def rstamp(a, kid, slot, wavesel, wavereg="s16", pfx="RS"):
    if os.environ.get("RTS") != "1": return
    a("s_memrealtime s[90:91]")
    a("s_load_dwordx2 s[92:93], s[0:1], 56")
    a("s_waitcnt lgkmcnt(0)")
    a(f"s_cmp_eq_u32 {wavereg}, {wavesel}")
    a(f"s_cbranch_scc0 {pfx}_{kid}_{slot}")
    a(f"s_add_u32 s92, s92, {64 * 1024 * 1024 + kid * 65536}")
    a("s_addc_u32 s93, s93, 0")
    a("s_mov_b32 s94, 65536")
    a("s_mov_b32 s95, 0x00020000")
    a("s_and_b32 s93, s93, 0xffff")
    a("s_lshl_b32 s91, s2, 4")
    a("v_mov_b32 v14, s90")
    a("v_mov_b32 v15, s91")
    a(f"buffer_store_dword v14, v15, s[92:95], 0 offen offset:{slot * 4}")
    a("s_waitcnt vmcnt(0)")
    a.label(f"{pfx}_{kid}_{slot}")

def cost(ins):
    if ins.endswith(":"): return 0.25
    if ins.startswith("v_exp") or ins.startswith("v_rcp"): return 2.0
    if ins.startswith("s_"): return 0.25
    if ins.startswith("ds_"): return 0.5
    return 1.0

def interleave(a, mf, va, lead=0):
    ab = os.environ.get("ABL", "")
    if "V" in ab: va = [x for x in va if not x.startswith("v_") or x.startswith("v_add_u32") or x.startswith("v_cmp")]
    if "E" in ab: va = [x for x in va if not x.startswith("v_exp")]
    if "D" in ab: va = [x for x in va if not x.startswith("ds_")]
    if "M" in ab: mf = ["s_nop 0"] * len(mf)
    n = len(mf)
    tot = sum(cost(x) for x in va)
    slots = n - lead
    vi = 0; acc = 0.0
    for k, m in enumerate(mf):
        a(m)
        if k >= lead:
            target = tot * (k - lead + 1) / slots
            while vi < len(va) and (acc + cost(va[vi]) * 0.5 <= target or k == n - 1):
                a(va[vi]); acc += cost(va[vi]); vi += 1
    while vi < len(va):
        a(va[vi]); vi += 1

def merge(main, extra, upto=1.0):
    out = []
    n = max(1, int(len(main) * upto))
    ei = 0
    for k, m in enumerate(main):
        out.append(m)
        if k < n:
            tgt = len(extra) * (k + 1) // n
            while ei < tgt:
                out.append(extra[ei]); ei += 1
    out += extra[ei:]
    return out

import re
def _regs(tok):
    m = re.match(r"([av])\[(\d+):(\d+)\]", tok)
    if m: return {(m.group(1), r) for r in range(int(m.group(2)), int(m.group(3)) + 1)}
    m = re.match(r"([av])(\d+)$", tok)
    if m: return {(m.group(1), int(m.group(2)))}
    return set()
LOOKOLD = 4
def auto_lgkm(body):
    n = len(body)
    two = body + body
    out_waits = {}
    last_write = {}
    ds_seq = 0
    done_upto = -1
    for idx, ins in enumerate(two):
        t = ins.strip()
        if t.startswith("ds_read") or t.startswith("ds_bpermute"):
            d = t.split()[1].rstrip(",")
            for r in _regs(d): last_write[r] = ds_seq
            ds_seq += 1
        elif t.startswith("s_waitcnt") and "lgkmcnt(0)" in t:
            done_upto = ds_seq - 1
        elif t.startswith("v_mfma"):
            ops = [x.strip() for x in t.split(None, 1)[1].split(",")]
            need = -1
            for o in ops[1:3]:
                for r in _regs(o):
                    if r in last_write: need = max(need, last_write[r])
            if need > done_upto:
                cnt = 0
                for ins2 in two[idx + 1: idx + 60]:
                    t2 = ins2.strip()
                    if t2.startswith("v_mfma"):
                        cnt += 1
                        if cnt > 8: break
                        ops2 = [x.strip() for x in t2.split(None, 1)[1].split(",")]
                        for o in ops2[1:3]:
                            for r in _regs(o):
                                if r in last_write and last_write[r] <= ds_seq - 1 - LOOKOLD: need = max(need, last_write[r])
                N = ds_seq - 1 - need
                N = min(N, 15)
                done_upto = ds_seq - 1 - N
                if idx >= n: out_waits[idx - n] = N
                else: out_waits.setdefault(idx, None)
    res = []
    for i, ins in enumerate(body):
        if out_waits.get(i) is not None:
            res.append(f"s_waitcnt lgkmcnt({out_waits[i]})")
        res.append(ins)
    return res

class Buf:
    def __init__(self): self.l = []
    def __call__(self, s): self.l.append(s)

def place(mf, fills):
    gaps = [[] for _ in mf]
    ab = os.environ.get("ABL", "")
    for (st, en, L) in fills:
        if "V" in ab: L = [x for x in L if not x.startswith("v_") or x.startswith("v_add_u32") or x.startswith("v_cmp")]
        if "E" in ab: L = [x for x in L if not x.startswith("v_exp")]
        if "P" in ab: L = [x for x in L if not (x.startswith("v_") and not x.startswith("v_exp")) or x.startswith("v_add_u32") or x.startswith("v_cmp")]
        if "D" in ab: L = [x for x in L if not x.startswith("ds_")]
        if "K" in ab: L = [x for x in L if not x.startswith("ds_read_b128")]
        if "T" in ab: L = [x for x in L if not x.startswith("ds_read_b64_tr")]
        if "N" in ab: L = [x.replace("ds_read_b64_tr_b16", "ds_read_b64") for x in L]
        if not L: continue
        tot = sum(cost(x) for x in L); acc = 0.0
        for x in L:
            pos = st + int((acc + cost(x) * 0.5) / tot * (en - st)) if tot > 0 else st
            pos = min(pos, en - 1)
            gaps[pos].append(x); acc += cost(x)
    out = []
    for m, g in zip(mf, gaps):
        out.append(m); out += g
    return out

def tr_addr_setup(a, dst, base_imm):
    a("v_lshrrev_b32 v5, 2, v2")
    a("v_and_b32 v6, 3, v2")
    a("v_lshl_add_u32 v7, v1, 3, v5")
    a("v_lshlrev_b32 v7, 8, v7")
    a("v_lshl_add_u32 v7, v6, 6, v7")
    if base_imm:
        a(f"v_add_u32 v7, {base_imm}, v7")
    for ih in range(4):
        a(f"v_xor_b32 v9, {ih}, v5")
        a(f"v_lshl_add_u32 v{dst + ih}, v9, 4, v7")

def gen_attn(a):
    a.raw(".globl attn_kernel")
    a.raw(".p2align 8")
    a.raw(".type attn_kernel,@function")
    a.label("attn_kernel")
    a("s_cmp_ge_u32 s2, 256")
    a("s_cbranch_scc1 A_END")
    a("s_load_dwordx8 s[4:11], s[0:1], 0")
    a("s_load_dwordx2 s[12:13], s[0:1], 56")
    a("s_load_dwordx2 s[84:85], s[0:1], 32")
    if os.environ.get("MAPB", "1") == "1":
        a("s_lshr_b32 s14, s2, 5")
        if os.environ.get("MAPC", "1") == "1":
            a("s_and_b32 s15, s2, 7")
            a("s_lshl_b32 s15, s15, 2")
            a("s_lshr_b32 s17, s2, 3")
            a("s_and_b32 s17, s17, 3")
            a("s_or_b32 s15, s15, s17")
        else:
            a("s_and_b32 s15, s2, 31")
    else:
        a("s_and_b32 s14, s2, 7")
        a("s_lshr_b32 s15, s2, 3")
    a("v_lshrrev_b32 v1, 6, v0")
    a("v_and_b32 v0, 63, v0")
    a("s_nop 0")
    a("v_readfirstlane_b32 s16, v1")
    a("s_waitcnt lgkmcnt(0)")
    a("s_mul_i32 s17, s14, 147456")
    srd(a, 20, 4, 5, 17, 147456)
    a("s_lshl_b32 s17, s14, 5")
    a("s_add_u32 s17, s17, s15")
    a("s_lshl_b32 s17, s17, 18")
    srd(a, 24, 6, 7, 17, 262144)
    srd(a, 28, 8, 9, 17, 262144)
    a("s_lshl_b32 s17, s15, 8")
    a("s_sub_u32 s18, 4194304, s17")
    srd(a, 32, 10, 11, 17, "s18")
    a("s_mul_i32 s18, s14, 1179648")
    a("s_lshl_b32 s17, s15, 12")
    a("s_add_u32 s18, s18, s17")
    a("s_sub_u32 s19, 1179648, s17")
    srd(a, 36, 12, 13, 18, "s19")
    if os.environ.get("ROT", "1") == "1":
        a("s_lshl_b32 s46, s14, 1")
        a("s_and_b32 s47, s15, 3" if os.environ.get("MAPC", "1") == "1" else "s_lshr_b32 s47, s15, 3")
        a("s_mul_i32 s47, s47, 5")
        a("s_add_u32 s46, s46, s47")
    else:
        a("s_mov_b32 s46, 0")
    stamp(a, 0, 0)
    stamp(a, 8, 3)
    rstamp(a, 0, 0, 0)
    a("v_lshrrev_b32 v1, 4, v0")
    a("v_and_b32 v2, 15, v0")
    a("s_cmp_eq_u32 s16, 3")
    a("s_cbranch_scc1 A_LOADER")

    WQL = 98304
    a("s_mul_i32 s17, s16, 49152")
    a("v_lshrrev_b32 v4, 2, v0")
    a("v_lshlrev_b32 v4, 10, v4")
    a("v_and_b32 v5, 3, v0")
    a("v_lshl_add_u32 v4, v5, 4, v4")
    a("v_add_u32 v10, s17, v4")
    a("v_add_u32 v11, 16384, v10")
    a("v_add_u32 v12, 32768, v10")
    XR = 64
    XF = 16
    AF = 96
    QTA = 0
    def qt(t, i): return QTA + (t * 8 + i) * 4
    XLA = int(os.environ.get("XLA", "4"))
    def xl(c):
        L = [f"s_add_u32 s47, s46, {c}", "s_and_b32 s47, s47, 15", "s_lshl_b32 s47, s47, 6"]
        for t in range(3):
            L.append(f"buffer_load_dwordx4 {vr(XR + (c % 6) * 12 + t * 4, 4)}, v{10 + t}, s[20:23], s47 offen")
        return L
    for c in range(XLA):
        for x in xl(c): a(x)
    a("v_lshlrev_b32 v13, 4, v2")
    a("v_lshl_add_u32 v13, v1, 2, v13")
    TA = 56
    tr_addr_setup(a, TA, WQL)
    for i in range(96):
        a(f"v_accvgpr_write_b32 {ar(QTA + i)}, 0")
    def qreads(c):
        L = []
        if c < 16:
            for t in range(3):
                for e in range(4):
                    L.append(f"ds_bpermute_b32 v{XF + (c & 1) * 12 + t * 4 + e}, v13, v{XR + (c % 6) * 12 + t * 4 + e}")
            for i in range(8):
                for hh in range(2):
                    L.append(f"ds_read_b64_tr_b16 {ar(AF + (c & 1) * 32 + i * 4 + hh * 2, 2)}, v{TA + (i >> 1)} offset:{(c & 7) * 8192 + hh * 1024 + (i & 1) * 8}")
        return L
    MN = 136; THR = 148; LS = 151; CL = 154
    KA = 160; VA = 164; KA0 = 172; VA0 = 176
    EB = 184; TMP = 232; VF = 160
    for t in range(3):
        for r in range(4):
            a(f"v_mov_b32 {vr(MN + t * 4 + r)}, 0")
        a(f"v_mov_b32 {vr(THR + t)}, -1.0")
        a(f"v_mov_b32 {vr(CL + t)}, 0xff800000")
        a(f"v_mov_b32 {vr(LS + t)}, 0")
    for i in range(64):
        a(f"v_accvgpr_write_b32 {ar(VF + i)}, 0")
    a("v_and_b32 v5, 3, v2")
    a("v_lshlrev_b32 v5, 2, v5")
    a("v_lshrrev_b32 v6, 2, v2")
    a("v_or_b32 v5, v5, v6")
    a("v_lshlrev_b32 v6, 2, v1")
    a("v_xor_b32 v5, v5, v6")
    for s in range(4):
        a(f"v_xor_b32 v6, {s}, v5")
        a(f"v_lshlrev_b32 v6, 4, v6")
        a(f"v_lshl_add_u32 {vr(KA0 + s)}, v2, 8, v6")
    a("v_lshrrev_b32 v5, 2, v2")
    a("v_and_b32 v6, 3, v2")
    a("v_lshl_add_u32 v7, v1, 2, v5")
    a("v_and_b32 v8, 7, v7")
    a("v_lshlrev_b32 v7, 8, v7")
    a("v_lshrrev_b32 v9, 1, v6")
    a("v_lshl_add_u32 v7, v9, 4, v7")
    a("v_and_b32 v9, 1, v6")
    a("v_lshl_add_u32 v7, v9, 3, v7")
    a("v_add_u32 v7, 16384, v7")
    for i in range(8):
        a(f"v_xor_b32 v9, {i}, v8")
        a(f"v_lshl_add_u32 {vr(VA0 + i)}, v9, 5, v7")
    for e in range(16):
        a(f"v_mov_b32 v{EB + 32 + e}, 0")
    for e in range(8):
        a(f"v_mov_b32 v{TMP + 16 + e}, 0")
    a(f"v_mov_b32 v{THR + 2}, 1.0")
    a(f"s_waitcnt vmcnt({3 * (XLA - 1)})")
    a("s_barrier")
    for x in qreads(0): a(x)
    for c in range(16):
        a(f"s_waitcnt lgkmcnt(0) vmcnt({max(0, 3 * (min(16, c + XLA) - (c + 2)))})")
        if TS and os.environ.get("QTS") == "1" and c < 14:
            lstamp(a, c)
        a("s_barrier")
        mf = [f"v_mfma_f32_16x16x32_bf16 {ar(qt(t, i), 4)}, {ar(AF + (c & 1) * 32 + i * 4, 4)}, {vr(XF + (c & 1) * 12 + t * 4, 4)}, {ar(qt(t, i), 4)}"
              for i in range(8) for t in range(3)]
        for x in place(mf, [(0, 20, qreads(c + 1)), (16, 24, xl(c + XLA) if c + XLA < 16 else [])]):
            a(x)
    a("s_nop 7")
    QF = 16
    def qf(t, s): return QF + (t * 4 + s) * 4
    for t in range(3):
        for s in range(4):
            for p in range(4):
                src = qt(t, 2 * s + (p >> 1)) + (p & 1) * 2
                a(f"v_accvgpr_read_b32 v8, {ar(src)}")
                a(f"v_accvgpr_read_b32 v9, {ar(src + 1)}")
                a(f"v_mul_f32 v8, {f32bits(C_SCALE):#x}, v8")
                a(f"v_mul_f32 v9, {f32bits(C_SCALE):#x}, v9")
                a(f"v_cvt_pk_bf16_f32 {vr(qf(t, s) + p)}, v8, v9")
    a("s_waitcnt vmcnt(0)")
    stamp(a, 1, 0)
    SB = 64; PB = 112
    MN = 136
    THR = 148; LS = 151; CL = 154
    KA = 160; VA = 164; KA0 = 172; VA0 = 176
    EB = 184
    TMP = 232
    OA = 0; KF = 96; VF = 160
    def sreg(t, kt): return SB + (t * 4 + kt) * 4
    def preg(t, u): return PB + (t * 2 + u) * 4
    def oreg(t, i): return OA + (t * 8 + i) * 4
    def kf(kt, s): return KF + (kt * 4 + s) * 4
    def vf(i, u): return VF + (i * 2 + u) * 4
    for i in range(96):
        a(f"v_accvgpr_write_b32 {ar(OA + i)}, 0")
    a(f"s_mov_b32 s50, {f32bits(2.0 ** T_LOG2):#x}")

    def qk(t):
        L = []
        order = [(kt, s) for kt in range(4) for s in range(4)]
        if os.environ.get("QKO") == "1":
            order = [(kp * 2 + k2, s) for kp in range(2) for s in range(4) for k2 in range(2)]
        for (kt, s) in order:
            if True:
                c = vr(MN + t * 4, 4) if s == 0 else vr(sreg(t, kt), 4)
                L.append(f"v_mfma_f32_16x16x32_bf16 {vr(sreg(t, kt), 4)}, {ar(kf(kt, s), 4)}, {vr(qf(t, s), 4)}, {c}")
        return L
    def pv(t):
        L = []
        for u in range(2):
            for i in range(8):
                L.append(f"v_mfma_f32_16x16x32_bf16 {ar(oreg(t, i), 4)}, {ar(vf(i, u), 4)}, {vr(preg(t, u), 4)}, {ar(oreg(t, i), 4)}")
        return L
    def sumtree(t):
        E = EB + t * 16; T = TMP + t * 8
        return
    def sm1(t):
        S = sreg(t, 0); E = EB + t * 16; T = TMP + t * 8
        L = []
        for e in range(16):
            L.append(f"v_exp_f32 v{E+e}, v{S+e}")
            if e in (3, 5, 7, 9):
                k = (e - 3)
                L.append(f"v_add_f32 v{T + k // 2}, v{E+k}, v{E+k+1}")
        return L
    def sm2(t, tail=False):
        S = sreg(t, 0); E = EB + t * 16; T = TMP + t * 8
        L = []
        for k in (8, 10, 12, 14):
            L.append(f"v_add_f32 v{T + k // 2}, v{E+k}, v{E+k+1}")
        L += [f"v_add_f32 v{T}, v{T}, v{T+1}", f"v_add_f32 v{T+2}, v{T+2}, v{T+3}",
              f"v_add_f32 v{T+4}, v{T+4}, v{T+5}", f"v_add_f32 v{T+6}, v{T+6}, v{T+7}",
              f"v_add_f32 v{T}, v{T}, v{T+2}", f"v_add_f32 v{T+4}, v{T+4}, v{T+6}",
              f"v_add_f32 v{T}, v{T}, v{T+4}",
              f"v_cmp_gt_f32 vcc, v{T}, v{THR+t}",
              f"s_cbranch_vccnz A_SLOW_{t}{'T' if tail else ''}\nA_BACK_{t}{'T' if tail else ''}:",
              f"v_add_f32 v{LS+t}, v{LS+t}, v{T}"]
        for q in range(8):
            L.append(f"v_cvt_pk_bf16_f32 v{preg(t, 0) + q}, v{E+2*q}, v{E+2*q+1}")
        return L
    def kreads():
        return [f"ds_read_b128 {ar(kf(kt, s), 4)}, {vr(KA + s)} offset:{kt * 4096}" for kt in range(4) for s in range(4)]
    def vreads():
        return [f"ds_read_b64_tr_b16 {ar(vf(i, u) + hh * 2, 2)}, {vr(VA + i)} offset:{(2 * u + hh) * 4096}"
                for u in range(2) for i in range(8) for hh in range(2)]
    a("s_mov_b32 s17, 0")
    a("s_mov_b32 s18, 0")
    for s in range(4):
        a(f"v_mov_b32 {vr(KA + s)}, {vr(KA0 + s)}")
    a("s_barrier")
    stamp(a, 2, 0)
    KR = kreads(); VR = vreads()
    for x in KR[:12]:
        a(x)
    a("s_waitcnt lgkmcnt(0)")
    vaddr = [f"v_add_u32 {vr(VA + i)}, s17, {vr(VA0 + i)}" for i in range(8)]
    kaddr = [f"v_add_u32 {vr(KA + s)}, s17, {vr(KA0 + s)}" for s in range(4)]
    body = []
    body += place(qk(0), [(0, 6, KR[12:16]), (0, 16, sm2(2) + ["s_cmp_eq_u32 s18, 0", "s_cbranch_scc1 A_FIX\nA_FIXBACK:"])])
    body += ["s_nop 1"]
    body += place(pv(2), [(0, 4, vaddr), (2, 16, sm1(0)), (8, 16, VR[:16])])
    body += place(qk(1), [(0, 16, sm2(0)), (0, 12, VR[16:])])
    body += ["s_add_u32 s17, s17, 32768", "s_cmp_eq_u32 s17, 163840", "s_cselect_b32 s17, 0, s17"]
    body += place(pv(0), [(0, 2, kaddr), (1, 16, sm1(1))])
    if os.environ.get("NOBAR") != "1":
        body += ["s_barrier"]
    body += place(qk(2), [(0, 16, sm2(1)), (4, 8, KR[0:4]), (8, 12, KR[4:8])])
    body += ["s_nop 1"]
    body += place(pv(1), [(2, 16, sm1(2)), (0, 8, KR[8:12])])
    body += ["s_add_u32 s18, s18, 1", "s_cmp_lt_u32 s18, 16"]
    body = auto_lgkm(body)
    if os.environ.get("KVARCH") == "1":
        def remap(m):
            lo, hi = int(m.group(1)), int(m.group(2))
            if lo >= 96:
                lo2 = 16 + (lo - 96) % 48
                return f"v[{lo2}:{lo2 + hi - lo}]"
            return m.group(0)
        body = [re.sub(r"a\[(\d+):(\d+)\]", remap, x) for x in body]
    a.label("A_LOOP")
    for x in body:
        a(x)
    a("s_cbranch_scc1 A_LOOP")
    stamp(a, 3, 0)
    a("s_nop 1")
    for x in sm2(2, True):
        a(x)
    a("s_nop 1")
    for x in pv(2):
        a(x)
    a("s_waitcnt lgkmcnt(0)")
    a("s_nop 15")
    a("s_mul_i32 s17, s16, 393216")
    a("v_lshrrev_b32 v5, 1, v1")
    a("v_lshlrev_b32 v5, 8, v5")
    a("v_lshl_add_u32 v5, v2, 4, v5")
    a("v_and_b32 v6, 1, v1")
    a("v_lshl_add_u32 v5, v6, 3, v5")
    a("v_add_u32 v5, s17, v5")
    a("s_mov_b32 s42, 0")
    a("s_mov_b32 s43, 131072")
    a("s_mov_b32 s44, 262144")
    for t in range(3):
        a(f"v_mov_b32 v{TMP}, v{LS+t}")
        a(f"v_mov_b32 v{TMP+1}, v{LS+t}")
        a("s_nop 1")
        a(f"v_permlane32_swap_b32 v{TMP}, v{TMP+1}")
        a(f"v_add_f32 v{TMP}, v{TMP}, v{TMP+1}")
        a(f"v_mov_b32 v{TMP+1}, v{TMP}")
        a("s_nop 1")
        a(f"v_permlane16_swap_b32 v{TMP}, v{TMP+1}")
        a(f"v_add_f32 v{TMP}, v{TMP}, v{TMP+1}")
        a(f"v_rcp_f32 v{TMP}, v{TMP}")
        a("s_nop 0")
        for i in range(8):
            for r in range(4):
                a(f"v_accvgpr_read_b32 v{TMP+2+r}, {ar(oreg(t, i) + r)}")
            for r in range(4):
                a(f"v_mul_f32 v{TMP+2+r}, v{TMP+2+r}, v{TMP}")
            d = 64 + (t * 8 + i) * 2
            a(f"v_cvt_pk_bf16_f32 v{d}, v{TMP+2}, v{TMP+3}")
            a(f"v_cvt_pk_bf16_f32 v{d+1}, v{TMP+4}, v{TMP+5}")
            a(f"buffer_store_dwordx2 {vr(d, 2)}, v5, s[36:39], s{42+t} offen offset:{(i & 1) * 512 + (i >> 1) * 1024}{os.environ.get('OST', '')}")
    if TS:
        a("s_waitcnt vmcnt(0)")
    stamp(a, 4, 0)
    if os.environ.get("RTS") == "1": a("s_waitcnt vmcnt(0)")
    rstamp(a, 0, 1, 0)
    if os.environ.get("QTS") == "1":
        ldump(a, 14, 0, 16, "TQ")
    a("s_branch A_END")
    a.label("A_FIX")
    a(f"v_mov_b32 v{THR + 2}, -1.0")
    a("s_branch A_FIXBACK")
    for (t, sfx) in ((0, ""), (1, ""), (2, ""), (2, "T")):
        S = sreg(t, 0); E = EB + t * 16; T = TMP + t * 8
        a.label(f"A_SLOW_{t}{sfx}")
        a(f"v_max3_f32 v{T}, v{S}, v{S+1}, v{S+2}")
        a(f"v_max3_f32 v{T+1}, v{S+3}, v{S+4}, v{S+5}")
        a(f"v_max3_f32 v{T+2}, v{S+6}, v{S+7}, v{S+8}")
        a(f"v_max3_f32 v{T+3}, v{S+9}, v{S+10}, v{S+11}")
        a(f"v_max3_f32 v{T}, v{T}, v{T+1}, v{T+2}")
        a(f"v_max3_f32 v{T+4}, v{S+12}, v{S+13}, v{S+14}")
        a(f"v_max3_f32 v{T}, v{T}, v{T+3}, v{S+15}")
        a(f"v_max_f32 v{T}, v{T}, v{T+4}")
        a(f"v_mov_b32 v{T+1}, v{T}")
        a("s_nop 1")
        a(f"v_permlane32_swap_b32 v{T}, v{T+1}")
        a(f"v_max_f32 v{T}, v{T}, v{T+1}")
        a(f"v_mov_b32 v{T+1}, v{T}")
        a("s_nop 1")
        a(f"v_permlane16_swap_b32 v{T}, v{T+1}")
        a(f"v_max3_f32 v{T}, v{T}, v{T+1}, v{CL+t}")
        a(f"v_mov_b32 v{CL+t}, 0")
        a(f"v_mov_b32 v{THR+t}, s50")
        a(f"v_sub_f32 v{T+1}, 0, v{T}")
        a(f"v_exp_f32 v{T+1}, v{T+1}")
        for r in range(4):
            a(f"v_sub_f32 v{MN + t * 4 + r}, v{MN + t * 4 + r}, v{T}")
        a(f"v_min_f32 v{T+1}, v{T+1}, s50")
        a(f"v_mul_f32 v{LS+t}, v{LS+t}, v{T+1}")
        a("s_nop 7")
        for i in range(32):
            a(f"v_accvgpr_read_b32 v{T+2+(i&3)}, {ar(oreg(t, 0) + i)}")
            a(f"v_mul_f32 v{T+2+(i&3)}, v{T+2+(i&3)}, v{T+1}")
            a(f"v_accvgpr_write_b32 {ar(oreg(t, 0) + i)}, v{T+2+(i&3)}")
        for e in range(16):
            a(f"v_sub_f32 v{E+e}, v{S+e}, v{T}")
        for e in range(16):
            a(f"v_exp_f32 v{E+e}, v{E+e}")
        a("s_nop 0")
        a(f"v_add_f32 v{T}, v{E}, v{E+1}")
        for e in range(2, 16):
            a(f"v_add_f32 v{T}, v{T}, v{E+e}")
        a(f"s_branch A_BACK_{t}{sfx}")

    a.label("A_LOADER")
    for q in range(4):
        a(f"v_lshlrev_b32 v3, 2, v1")
        a(f"v_or_b32 v3, {q}, v3")
        a(f"v_xor_b32 v3, v3, v2")
        a(f"v_lshlrev_b32 v3, 4, v3")
        a(f"v_lshl_add_u32 v{4+q}, v1, 8, v3")
    for p in range(2):
        a(f"v_or_b32 v3, {p << 2}, v1")
        a(f"v_lshlrev_b32 v3, 1, v3")
        a(f"v_xor_b32 v3, v3, v2")
        a(f"v_lshlrev_b32 v3, 4, v3")
        a(f"v_lshl_add_u32 v{8+p}, v1, 8, v3")
    def issue_stage(bar_every2):
        for kv in range(2):
            for G in range(4):
                a("s_waitcnt vmcnt(59)")
                a(f"s_add_u32 m0, s40, {kv * 16384 + G * 4096}")
                a(f"s_add_u32 s17, s41, {G * 4096}")
                for q in range(4):
                    vo = 4 + q if kv == 0 else 8 + (q & 1)
                    sr = "s[24:27]" if kv == 0 else "s[28:31]"
                    if os.environ.get("NOKV", "0") != "1":
                        a(f"buffer_load_dwordx4 v{vo}, {sr}, s17 offen offset:{q * 1024}{NT_FLAG} lds")
                if bar_every2 and (G & 1):
                    a("s_barrier")
        a("s_add_u32 s41, s41, 16384")
        a("s_add_u32 s40, s40, 32768")
        a("s_cmp_eq_u32 s40, 163840")
        a("s_cselect_b32 s40, 0, s40")
    a("v_xor_b32 v3, v2, v1")
    a("v_lshlrev_b32 v3, 4, v3")
    a("v_lshl_add_u32 v10, v1, 13, v3")
    ops = []
    def throttle(k):
        a(f"s_waitcnt vmcnt({63 - k})")
    def wq_chunk(c):
        for half in range(2):
            throttle(4)
            a(f"s_mov_b32 m0, {98304 + (c & 7) * 8192 + half * 4096}")
            a(f"s_add_u32 s47, s46, {c}")
            a("s_and_b32 s47, s47, 15")
            a("s_lshl_b32 s47, s47, 18")
            for q in range(4):
                n = half * 4 + q
                a(f"s_add_u32 s17, s47, {(4 * n) * 8192 - q * 1024}")
                if os.environ.get("NOWQ") != "1":
                    a(f"buffer_load_dwordx4 v10, s[32:35], s17 offen offset:{q * 1024} lds")
                    ops.append(("wq", c))
    def kv_group(st, kv, G):
        throttle(4)
        a(f"s_mov_b32 m0, {(st % NS) * 32768 + kv * 16384 + G * 4096}")
        a(f"s_mov_b32 s17, {st * 16384 + G * 4096}")
        for q in range(4):
            vo = 4 + q if kv == 0 else 8 + (q & 1)
            sr = "s[24:27]" if kv == 0 else "s[28:31]"
            if os.environ.get("NOKV", "0") != "1":
                a(f"buffer_load_dwordx4 v{vo}, {sr}, s17 offen offset:{q * 1024}{NT_FLAG} lds")
                ops.append(("kv", st))
    def wait_for(tag):
        last = max(i for i, o in enumerate(ops) if o == tag) if tag in ops else None
        if last is None: return
        n = len(ops) - 1 - last
        if n < 63: a(f"s_waitcnt vmcnt({n})")
    kvq = [(st, kv, G) for st in range(3) for kv in range(2) for G in range(4)]
    KVS = int(os.environ.get("KVS", "9")); KVR = int(os.environ.get("KVR", "3"))
    for c in range(3): wq_chunk(c)
    if KVS == 0:
        kv_group(*kvq.pop(0)); kv_group(*kvq.pop(0))
    for c in range(3, 8): wq_chunk(c)
    for c in range(17):
        if c < 16: wait_for(("wq", c))
        a("s_barrier")
        if c >= 1 and c + 7 < 16: wq_chunk(c + 7)
        if c >= KVS:
            for e in range(KVR):
                if kvq: kv_group(*kvq.pop(0))
    while kvq: kv_group(*kvq.pop(0))
    stamp(a, 9, 3)
    wait_for(("kv", 0))
    a("s_barrier")
    if os.environ.get("NOBAR") == "1":
        a("s_branch A_END")
    a("s_mov_b32 s40, 98304")
    a("s_mov_b32 s41, 49152")
    a("s_mov_b32 s42, 3")
    issue_stage(False)
    a("s_mov_b32 s42, 4")
    a("s_branch A_LENTRY")
    a.label("A_LLOOP")
    a("s_barrier")
    a.label("A_LENTRY")
    issue_stage(False)
    a("s_add_u32 s42, s42, 1")
    a("s_cmp_lt_u32 s42, 16")
    a("s_cbranch_scc1 A_LLOOP")
    stamp(a, 10, 3)
    a("s_barrier")
    a("s_barrier")
    a("s_waitcnt vmcnt(32)")
    a("s_barrier")
    a("s_waitcnt vmcnt(0)")
    stamp(a, 11, 3)
    a("s_barrier")
    if os.environ.get("WOPF", "1") == "1":
        a("s_and_b32 s17, s2, 7")
        a("s_lshl_b32 s17, s17, 19")
        a("s_lshr_b32 s18, s2, 3")
        a("s_lshl_b32 s18, s18, 14")
        a("s_add_u32 s17, s17, s18")
        srd(a, 80, 84, 85, 17, 16384)
        a("v_lshlrev_b32 v3, 4, v0")
        for k in range(16):
            a(f"s_mov_b32 s17, {k * 1024}")
            a(f"buffer_load_dwordx4 v[{16 + 4 * k}:{19 + 4 * k}], v3, s[80:83], s17 offen")
    a("s_barrier")
    a.label("A_END")
    a("s_endpgm")

def gen_oproj(a):
    a.raw(".globl oproj_kernel")
    a.raw(".p2align 8")
    a.raw(".type oproj_kernel,@function")
    a.label("oproj_kernel")
    a("s_cmp_ge_u32 s2, 256")
    a("s_cbranch_scc1 O_END")
    a("s_load_dwordx2 s[4:5], s[0:1], 32")
    a("s_load_dwordx2 s[8:9], s[0:1], 56")
    a("s_and_b32 s18, s2, 7")
    a("s_lshr_b32 s15, s2, 3")
    a("s_and_b32 s14, s15, 7")
    a("s_lshr_b32 s17, s15, 3")
    a("v_lshrrev_b32 v1, 6, v0")
    a("v_and_b32 v0, 63, v0")
    a("s_nop 0")
    a("v_readfirstlane_b32 s16, v1")
    a("s_waitcnt lgkmcnt(0)")
    a("s_lshl_b32 s19, s18, 19")
    a("s_lshl_b32 s20, s17, 8")
    a("s_add_u32 s19, s19, s20")
    a("s_sub_u32 s20, 524288, s20")
    srd(a, 24, 4, 5, 19, "s20")
    a("s_mul_i32 s19, s14, 1179648")
    a("s_lshl_b32 s20, s18, 14")
    a("s_add_u32 s19, s19, s20")
    a("s_sub_u32 s20, 1179648, s20")
    srd(a, 28, 8, 9, 19, "s20")
    a("s_lshl_b32 s19, s18, 3")
    a("s_add_u32 s19, s19, s14")
    a("s_mul_i32 s19, s19, 36")
    a("s_add_u32 s19, s19, s17")
    a("s_lshl_b32 s19, s19, 13")
    a(f"s_add_u32 s19, s19, {PART_OFF}")
    a("s_lshl_b32 s20, s17, 13")
    a("s_sub_u32 s20, 294912, s20")
    srd(a, 32, 8, 9, 19, "s20")
    stamp(a, 0, 0, pfx="TO")
    rstamp(a, 1, 0, 0)
    a("v_lshrrev_b32 v1, 4, v0")
    a("v_and_b32 v2, 15, v0")
    a("s_lshl_b32 s40, s14, 1")
    a("s_mul_i32 s41, s17, 5")
    a("s_add_u32 s40, s40, s41")
    a("s_cmp_eq_u32 s16, 3")
    a("s_cbranch_scc1 O_LOADER")
    BF = 64
    a("s_mul_i32 s19, s16, 393216")
    a("v_lshlrev_b32 v4, 4, v0")
    a("v_add_u32 v4, s19, v4")
    a("v_add_u32 v10, 0x20000, v4")
    a("v_add_u32 v11, 0x40000, v4")
    vb = [4, 10, 11]
    def bl(c):
        L = [f"s_add_u32 s41, s40, {c}", "s_and_b32 s41, s41, 15", "s_lshl_b32 s43, s41, 10"]
        for t in range(3):
            L.append(f"buffer_load_dwordx4 {ar(BF + (c * 3 + t) * 4, 4)}, v{vb[t]}, s[28:31], s43 offen")
        return L
    PRE = int(os.environ.get('PRE', '6'))
    for c in range(PRE):
        for x in bl(c): a(x)
    TA = 56
    tr_addr_setup(a, TA, 0)
    ACC = 64; AF = 0
    def acc(t, i): return ACC + (t * 8 + i) * 4
    for e in range(96):
        a(f"v_mov_b32 v{ACC + e}, 0")
    for ih in range(4):
        a(f"v_add_u32 v{60 + ih}, 0x10000, v{TA + ih}")
    def oreads(c):
        if c >= 16: return []
        ab = AF + (c & 1) * 32
        base = TA if c < 8 else 60
        return [f"ds_read_b64_tr_b16 {ar(ab + i * 4 + hh * 2, 2)}, v{base + (i >> 1)} offset:{(c & 7) * 8192 + hh * 1024 + (i & 1) * 8}"
                for i in range(8) for hh in range(2)]
    a("s_barrier")
    for x in oreads(0): a(x)
    for c in range(16):
        a(f"s_waitcnt lgkmcnt(0) vmcnt({3 * (min(16, c + PRE) - (c + 1))})")
        if c % 2 == 1 and c < 15:
            a("s_barrier")
        ab = AF + (c & 1) * 32
        mf = [f"v_mfma_f32_16x16x32_bf16 {vr(acc(t, i), 4)}, {ar(ab + i * 4, 4)}, {ar(BF + (c * 3 + t) * 4, 4)}, {vr(acc(t, i), 4)}"
              for i in range(8) for t in range(3)]
        for x in place(mf, [(0, 16, oreads(c + 1)), (14, 24, bl(c + PRE) if c + PRE < 16 else [])]):
            a(x)
    a("s_nop 15")
    stamp(a, 6, 0, pfx="TO")
    a("s_mul_i32 s19, s16, 98304")
    a("v_lshlrev_b32 v3, 4, v0")
    a("v_add_u32 v3, s19, v3")
    for t in range(3):
        a(f"s_mov_b32 s19, {t * 32768}")
        a(f"s_mov_b32 s20, {t * 32768 + 4096}")
        for i in range(8):
            a(f"buffer_store_dwordx4 {vr(acc(t, i), 4)}, v3, s[32:35], s{19 + (i >> 2)} offen offset:{(i & 3) * 1024}{os.environ.get('PST', ' sc0 sc1')}")
    if TS:
        a("s_waitcnt vmcnt(0)")
    stamp(a, 1, 0, pfx="TO")
    if os.environ.get("RTS") == "1": a("s_waitcnt vmcnt(0)")
    rstamp(a, 1, 1, 0)
    a("s_branch O_END")
    a.label("O_LOADER")
    a("v_xor_b32 v3, v2, v1")
    a("v_lshlrev_b32 v3, 4, v3")
    a("v_lshl_add_u32 v3, v1, 10, v3")
    def chunk(c):
        a(f"s_add_u32 s41, s40, {c}")
        a("s_and_b32 s41, s41, 15")
        a("s_lshl_b32 s42, s41, 15")
        for half in range(2):
            a("s_waitcnt vmcnt(59)")
            a(f"s_mov_b32 m0, {c * 8192 + half * 4096}")
            for q in range(4):
                a(f"s_add_u32 s17, s42, {(half * 4 + q) * 4096 - q * 1024}")
                a(f"buffer_load_dwordx4 v3, s[24:27], s17 offen offset:{q * 1024} lds")
    issued = 0
    for p in range(8):
        while issued < min(16, 2 * p + 6):
            chunk(issued); issued += 1
        n = 8 * (issued - (2 * p + 2))
        if n < 63: a(f"s_waitcnt vmcnt({n})")
        a("s_barrier")
    a.label("O_END")
    a("s_endpgm")

def gen_ored(a):
    a.raw(".globl ored_kernel")
    a.raw(".p2align 8")
    a.raw(".type ored_kernel,@function")
    a.label("ored_kernel")
    a("s_cmp_ge_u32 s2, 576")
    a("s_cbranch_scc1 R_END")
    a("s_load_dwordx2 s[4:5], s[0:1], 40")
    a("s_load_dwordx2 s[8:9], s[0:1], 56")
    a("v_lshrrev_b32 v1, 6, v0")
    a("v_and_b32 v0, 63, v0")
    a("s_nop 0")
    a("v_readfirstlane_b32 s16, v1")
    a("s_waitcnt lgkmcnt(0)")
    rstamp(a, 2, 0, 0)
    a("s_lshl_b32 s17, s2, 2")
    a("s_add_u32 s17, s17, s16")
    a("s_and_b32 s18, s17, 7")
    a("s_lshr_b32 s19, s17, 3")
    a("s_lshl_b32 s20, s17, 10")
    a(f"s_add_u32 s21, s20, {PART_OFF}")
    a(f"s_sub_u32 s22, {8 * 288 * 8192}, s20")
    srd(a, 24, 8, 9, 21, "s22")
    a("v_lshlrev_b32 v3, 4, v0")
    for k in range(8):
        a(f"s_mov_b32 s{32 + k}, {k * 288 * 8192}")
        a(f"buffer_load_dwordx4 {vr(8 + k * 4, 4)}, v3, s[24:27], s{32 + k} offen")
    a("s_lshr_b32 s20, s19, 2")
    a("s_lshl_b32 s20, s20, 14")
    a("s_and_b32 s21, s19, 3")
    a("s_lshl_b32 s21, s21, 8")
    a("s_add_u32 s20, s20, s21")
    a("s_lshl_b32 s21, s18, 3")
    a("s_add_u32 s20, s20, s21")
    a(f"s_sub_u32 s22, 1179648, s20")
    srd(a, 28, 4, 5, 20, "s22")
    a("v_lshrrev_b32 v1, 4, v0")
    a("v_and_b32 v2, 15, v0")
    a("v_lshlrev_b32 v4, 10, v2")
    a("v_lshl_add_u32 v4, v1, 6, v4")
    for k in range(1, 8):
        a(f"s_waitcnt vmcnt({7 - k})")
        for r in range(4):
            a(f"v_add_f32 v{8 + r}, v{8 + r}, v{8 + k * 4 + r}")
    a("v_cvt_pk_bf16_f32 v6, v8, v9")
    a("v_cvt_pk_bf16_f32 v7, v10, v11")
    a("buffer_store_dwordx2 v[6:7], v4, s[28:31], 0 offen")
    if os.environ.get("RTS") == "1": a("s_waitcnt vmcnt(0)")
    rstamp(a, 2, 1, 0)
    a.label("R_END")
    a("s_endpgm")

def kd(a, name, nfv, accum, sgpr=96):
    a.raw(f".amdhsa_kernel {name}")
    a.raw(f"  .amdhsa_next_free_vgpr {nfv}")
    a.raw(f"  .amdhsa_next_free_sgpr {sgpr}")
    a.raw(f"  .amdhsa_accum_offset {accum}")
    a.raw("  .amdhsa_group_segment_fixed_size 0")
    a.raw("  .amdhsa_kernarg_size 64")
    a.raw("  .amdhsa_user_sgpr_count 2")
    a.raw("  .amdhsa_user_sgpr_kernarg_segment_ptr 1")
    a.raw("  .amdhsa_system_sgpr_workgroup_id_x 1")
    a.raw(".end_amdhsa_kernel")

def main():
    a = Asm()
    a.raw("; @launch kernel=attn_kernel grid=(256,1,1) block=(256,1,1) lds=163840")
    a.raw("; @launch kernel=oproj_kernel grid=(256,1,1) block=(256,1,1) lds=131072")
    a.raw("; @launch kernel=ored_kernel grid=(576,1,1) block=(256,1,1) lds=0")
    a.raw('.amdgcn_target "amdgcn-amd-amdhsa--gfx950"')
    a.raw(".text")
    gen_attn(a)
    gen_oproj(a)
    gen_ored(a)
    a.raw('.section .rodata,"a"')
    a.raw(".p2align 6")
    kd(a, "attn_kernel", 480, 256)
    a.raw(".p2align 6")
    kd(a, "oproj_kernel", 512, 256)
    a.raw(".p2align 6")
    kd(a, "ored_kernel", 40, 40)
    open(sys.argv[1], "w").write(a.text())

main()
```
